```python
import torch

def _softmax(x, axis=-1):
    return torch.softmax(x, dim=axis)
def _gelu(x):
    return torch.nn.functional.gelu(x, approximate="tanh")
def _silu(x):
    return torch.nn.functional.silu(x)
def _sigmoid(x):
    return torch.sigmoid(x)
def _layernorm(x, axis=-1, eps=1e-5):
    m = x.mean(dim=axis, keepdim=True)
    v = x.var(dim=axis, keepdim=True, unbiased=False)
    return (x - m) / torch.sqrt(v + eps)
def _scatter_add(tgt, idx, src, axis=0):
    return tgt.clone().index_add_(axis, idx, src)
def _segment_sum(src, seg, n):
    out = torch.zeros((n,) + src.shape[1:], dtype=src.dtype)
    return out.index_add_(0, seg, src)
def _pad(x, pw):
    flat = tuple(v for pair in reversed(pw) for v in pair)
    return torch.nn.functional.pad(x, flat)

kernel_name = 'sequential_preLN__ssm_conv_s4d__glu_gated_glu__prompt'

def setup_inputs():

    _w = (lambda a: (lambda t: t.to(torch.bfloat16) if t.is_floating_point() else t)(torch.as_tensor(a)))
    def _A_setup():
        Bsz, L, D, N = 1, 2048, 512, 128
        return {
            "u": _w((lambda *s: torch.randn(*s, dtype=torch.bfloat16) * 0.05)(Bsz, L, D)),
            "log_A_real": _w((lambda *s: torch.randn(*s, dtype=torch.bfloat16) * 6.4)(D, N) * 0.5),
            "A_imag": _w((lambda *s: torch.randn(*s, dtype=torch.bfloat16) * 0.05)(D, N) * 3.14),
            "C_real": _w((lambda *s: torch.randn(*s, dtype=torch.bfloat16) * 0.05)(D, N) / N ** 0.5),
            "C_imag": _w((lambda *s: torch.randn(*s, dtype=torch.bfloat16) * 0.05)(D, N) / N ** 0.5),
            "log_dt": _w((lambda *s: torch.randn(*s, dtype=torch.bfloat16) * 0.05)(D) * 0.5 - 4.0),
            "D_skip": _w((lambda *s: torch.randn(*s, dtype=torch.bfloat16) * 0.05)(D)),
        }
    _A_in = _A_setup()

    def _B_setup():
        B, S, D, F = 1, 2048, 512, 1792
        return {
            "x": _w((lambda *s: torch.randn(*s, dtype=torch.bfloat16) * 0.05)(B, S, D)),
            "w_gate": _w((lambda *s: torch.randn(*s, dtype=torch.bfloat16) * 0.05)(D, F)),
            "w_up": _w((lambda *s: torch.randn(*s, dtype=torch.bfloat16) * 0.05)(D, F)),
            "w_down": _w((lambda *s: torch.randn(*s, dtype=torch.bfloat16) * 0.05)(F, D)),
        }
    _B_in = _B_setup()

    return {
        "A_u": _A_in["u"],
        "A_log_A_real": _A_in["log_A_real"],
        "A_A_imag": _A_in["A_imag"],
        "A_C_real": _A_in["C_real"],
        "A_C_imag": _A_in["C_imag"],
        "A_log_dt": _A_in["log_dt"],
        "A_D_skip": _A_in["D_skip"],
        "B_x": _B_in["x"],
        "B_w_gate": _B_in["w_gate"],
        "B_w_up": _B_in["w_up"],
        "B_w_down": _B_in["w_down"],
    }

def reference(A_u, A_log_A_real, A_A_imag, A_C_real, A_C_imag, A_log_dt, A_D_skip, B_x, B_w_gate, B_w_up, B_w_down):
    def _A_ref(u, log_A_real, A_imag, C_real, C_imag, log_dt, D_skip):
        L = u.shape[1]
        dt = torch.exp(log_dt)
        A = -torch.exp(log_A_real) + 1j * A_imag
        C = (C_real + 1j * C_imag) * dt[:, None]
        pos = (lambda x, dt: x.to(dt))(torch.arange(L), log_dt.dtype)
        P = torch.exp((A * dt[:, None])[:, :, None] * pos[None, None, :])
        K = 2.0 * torch.einsum("dn,dnl->dl", C, P).real
        L2 = 2 * L
        u_t = (lambda x, *d: x.permute(*d))(u, 0, 2, 1)
        Kf = (lambda x, *a, **k: torch.fft.rfft(x.float(), *a, **k))(K, L2)
        Uf = (lambda x, *a, **k: torch.fft.rfft(x.float(), *a, **k))(u_t, L2)
        y = (lambda x, *a, **k: torch.fft.irfft(x, *a, **k).to(torch.bfloat16))(Uf * Kf[None, :, :], L2)[:, :, :L]
        y = (lambda x, *d: x.permute(*d))(y, 0, 2, 1)
        return y + u * D_skip[None, None, :]

    def _B_ref(x, w_gate, w_up, w_down):
        g = torch.einsum("bsd,df->bsf", x, w_gate)
        u = torch.einsum("bsd,df->bsf", x, w_up)
        h = _sigmoid(g) * u
        return torch.einsum("bsf,fd->bsd", h, w_down)

    x = A_u
    h = x + _A_ref(_layernorm(x, axis=-1), A_log_A_real, A_A_imag, A_C_real, A_C_imag, A_log_dt, A_D_skip)
    h2 = h + _B_ref(_layernorm(h, axis=-1), B_w_gate, B_w_up, B_w_down)
    return h2
```

```python
HEADER_COMMENT = """; Kernarg layout for this problem (112 bytes, ptrs only, base s[0:1]):
"""


class Kern:
    def __init__(self, name, grid, block, lds=0, vgpr=128, agpr=0, sgpr=96):
        self.name = name
        self.grid = grid
        self.block = block
        self.lds = lds
        self.vgpr = vgpr
        self.agpr = agpr
        self.sgpr = sgpr
        self.lines = []
        self._lab = 0

    def __call__(self, s=""):
        for l in s.split("\n"):
            l = l.strip()
            if not l:
                continue
            if l.endswith(":"):
                self.lines.append(l)
            else:
                self.lines.append("  " + l)

    def label(self, base="L"):
        self._lab += 1
        return f"{self.name}_{base}{self._lab}"

    def text(self):
        out = [f".globl {self.name}", ".p2align 8", f".type {self.name},@function", f"{self.name}:"]
        import hazard
        out += hazard.fix(self.lines)
        return "\n".join(out) + "\n"

    def desc(self):
        acc = (self.vgpr + 3) // 4 * 4
        nfv = acc + self.agpr if self.agpr else self.vgpr
        return f""".amdhsa_kernel {self.name}
  .amdhsa_next_free_vgpr {nfv}
  .amdhsa_next_free_sgpr {self.sgpr}
  .amdhsa_accum_offset {acc}
  .amdhsa_group_segment_fixed_size 0
  .amdhsa_kernarg_size 112
  .amdhsa_user_sgpr_count 2
  .amdhsa_user_sgpr_kernarg_segment_ptr 1
  .amdhsa_system_sgpr_workgroup_id_x 1
.end_amdhsa_kernel
"""


def build_file(kerns, launches=None, single=False):
    if launches is None:
        launches = kerns
    s = HEADER_COMMENT
    for k in launches:
        if single:
            s += f"; @launch grid=({k.grid},1,1) block=({k.block},1,1) lds={k.lds}\n"
        else:
            s += f"; @launch kernel={k.name} grid=({k.grid},1,1) block=({k.block},1,1) lds={k.lds}\n"
    s += '.amdgcn_target "amdgcn-amd-amdhsa--gfx950"\n.text\n'
    for k in kerns:
        s += k.text()
    s += '.section .rodata,"a"\n'
    for k in kerns:
        s += ".p2align 6\n" + k.desc()
    return s
```

```python
from asmlib import *
MB = 1 << 20
UX_OFF = 0
KW_OFF = 4 * MB
H_OFF = 6 * MB
WP_OFF = 8 * MB
CSP_OFF = 12 * MB
HG_OFF = 13 * MB
WD_OFF = 21 * MB
CNT_OFF = 24 * MB
DBG_OFF = 32 * MB
DBG = False
NAME = "sequential_preLN__ssm_conv_s4d__glu_gated_glu__prompt"

def stamp0(k):
    k.nst = 0
    if common_dbg():
        k("s_memrealtime s[70:71]\ns_memtime s[72:73]")
def stamp(k, idx):
    if common_dbg():
        k(f"s_memtime s[{74+2*idx}:{75+2*idx}]")
def stamp_end(k, kidx, nst, ws="s[18:19]", wave="s3", vtmp=0):
    if not common_dbg(): return
    k(f"""
    s_waitcnt vmcnt(0) lgkmcnt(0)
    s_memtime s[{74+2*nst}:{75+2*nst}]
    s_memrealtime s[68:69]
    s_waitcnt lgkmcnt(0)
    s_lshl_b32 s66, s2, 4
    s_add_u32 s66, s66, {wave}
    s_lshl_b32 s66, s66, 6
    s_add_u32 s66, s66, {DBG_OFF + kidx*256*1024}
    v_mov_b32 v{vtmp+16}, s66
    v_mov_b32 v{vtmp}, s70
    v_mov_b32 v{vtmp+1}, s68
    """)
    for i in range(14):
        if i <= nst:
            k(f"s_sub_u32 s67, s{74+2*i}, s72\nv_mov_b32 v{vtmp+2+i}, s67")
        else:
            k(f"v_mov_b32 v{vtmp+2+i}, 0")
    k("s_mov_b64 exec, 1")
    for i in range(4):
        k(f"global_store_dwordx4 v{vtmp+16}, v[{vtmp+4*i}:{vtmp+4*i+3}], {ws} offset:{16*i}")

def wave_sum(k, v, s):
    for r in (8, 4, 2, 1):
        k(f"v_add_f32_dpp v{v}, v{v}, v{v} row_ror:{r} row_mask:0xf bank_mask:0xf")
    k(f"v_add_f32_dpp v{v}, v{v}, v{v} row_bcast:15 row_mask:0xa bank_mask:0xf")
    k(f"v_add_f32_dpp v{v}, v{v}, v{v} row_bcast:31 row_mask:0xc bank_mask:0xf")
    k(f"v_readlane_b32 s{s}, v{v}, 63")

def cmul(k, d, a, b, t):
    k(f"v_pk_mul_f32 v[{t}:{t+1}], v[{a}:{a+1}], v[{b}:{b+1}] op_sel:[1,1] op_sel_hi:[1,0]")
    k(f"v_pk_fma_f32 v[{d}:{d+1}], v[{a}:{a+1}], v[{b}:{b+1}], v[{t}:{t+1}] op_sel_hi:[0,1,1] neg_lo:[0,0,1]")

import struct
def f2h(x): return "0x%08x" % struct.unpack("<I", struct.pack("<f", x))[0]
def common_dbg():
    import sys
    return sys.modules["common"].DBG
```

```python
import re
TRANS = ("v_exp_", "v_log_", "v_rcp_", "v_rsq_", "v_sqrt_", "v_sin_", "v_cos_")
REG = re.compile(r"(?<![\w.])([vas])\[(\d+):(\d+)\]|(?<![\w.\[:])([vas])(\d+)(?![\w\]:])|(?<![\w])(vcc|exec|m0)(?:_lo|_hi)?(?![\w])")

def regs(tok):
    out = set()
    for m in REG.finditer(tok):
        if m.group(1):
            for i in range(int(m.group(2)), int(m.group(3)) + 1):
                out.add(m.group(1) + str(i))
        elif m.group(4):
            out.add(m.group(4) + m.group(5))
        else:
            out.add(m.group(6))
    return out

def split_ops(s):
    ops, d, cur = [], 0, ""
    for ch in s:
        if ch == "[": d += 1
        if ch == "]": d -= 1
        if ch == "," and d == 0:
            ops.append(cur.strip()); cur = ""
        else:
            cur += ch
    if cur.strip(): ops.append(cur.strip())
    return ops

class I:
    pass

def parse(line):
    l = line.split(";")[0].strip()
    i = I(); i.line = line; i.kind = "other"; i.w = set(); i.r = set(); i.ws = 1
    i.dpp = False; i.trans = False; i.dot = None; i.passes = 0; i.A = set(); i.C = set(); i.D = set()
    i.m0use = False; i.wide = set(); i.lanesel = set(); i.perm = False; i.rdlane = False; i.moved = False
    i.label = None; i.target = None
    if not l:
        i.kind = "none"; i.ws = 0; return i
    if l.endswith(":"):
        i.kind = "label"; i.label = l[:-1]; i.ws = 0; return i
    if l.startswith("."):
        i.kind = "none"; i.ws = 0; return i
    p = l.split(None, 1)
    op = p[0]; rest = p[1] if len(p) > 1 else ""
    i.op = op
    ops = split_ops(rest)
    mods = ""
    if ops:
        q = ops[-1].split(None, 1)
        if len(q) > 1 and not q[0].startswith("hwreg") and not q[0].startswith("vmcnt") and not q[0].startswith("lgkm"):
            ops[-1] = q[0]; mods = q[1]
    if op == "s_nop":
        i.kind = "salu"; i.ws = int(ops[0], 0) + 1; return i
    if op.startswith("s_cbranch") or op == "s_branch":
        i.kind = "branch"; i.target = ops[0]; return i
    if op.startswith("s_"):
        i.kind = "salu"
        if ops and not op.startswith(("s_cmp", "s_waitcnt", "s_barrier", "s_endpgm", "s_setprio", "s_sleep", "s_bitcmp")):
            i.w = regs(ops[0])
        return i
    if op.startswith("v_mfma"):
        i.kind = "mfma"
        i.passes = 8 if "32x32" in op else (2 if "4x4x4" in op else 4)
        i.D = regs(ops[0]); i.A = regs(ops[1]) | regs(ops[2]); i.C = regs(ops[3])
        i.Dtok = ops[0]; i.Ctok = ops[3]
        i.w = i.D; i.r = i.A | i.C
        return i
    if op.startswith("v_"):
        i.kind = "valu"
        i.trans = op.startswith(TRANS)
        i.dpp = ("_dpp" in op) or any(x in mods for x in ("row_", "quad_perm", "wave_"))
        i.perm = op.startswith("v_permlane")
        i.rdlane = op.startswith(("v_readlane", "v_readfirstlane"))
        if op.startswith("v_dot"): i.dot = op
        nd = 1
        if re.match(r"v_(add|sub|subrev|addc|subb|subbrev)_co_", op) or op.startswith(("v_div_scale", "v_mad_u64_u32")): nd = 2
        if op.startswith(("v_permlane16_swap", "v_permlane32_swap", "v_swap")):
            i.w = regs(ops[0]) | regs(ops[1]); i.r = set(i.w); return i
        if op.startswith("v_nop"): return i
        for o in ops[:nd]: i.w |= regs(o)
        for o in ops[nd:]: i.r |= regs(o)
        if op.startswith(("v_fmac", "v_mac", "v_dot2c", "v_pk_fmac", "v_writelane")) or i.dpp or "sdwa" in op:
            i.r |= regs(ops[0])
        if op.startswith("v_dot2c"): i.dotC = regs(ops[0])
        elif op.startswith("v_dot"): i.dotC = regs(ops[3])
        if op.startswith("v_cndmask") and len(ops) == 3: i.r.add("vcc")
        if op.startswith(("v_addc_co", "v_subb_co")) and len(ops) == 4: i.r.add("vcc")
        if op.startswith("v_cmpx"): i.w.add("exec")
        if op.startswith(("v_readlane", "v_writelane")): i.lanesel = regs(ops[2])
        if "dst_sel" in mods and "dst_sel:DWORD" not in mods: i.moved = True
        if "op_sel:" in mods and not op.startswith("v_pk_") and not op.startswith("v_dot"):
            m = re.search(r"op_sel:\[([\d,]+)\]", mods)
            if m and m.group(1).split(",")[-1] == "1" and len(m.group(1).split(",")) == len(ops): i.moved = True
        return i
    if op.startswith("ds_"):
        i.kind = "ds"
        if "addtid" in op: i.m0use = True
        if op.startswith(("ds_read", "ds_bpermute", "ds_permute", "ds_swizzle")) or "_rtn" in op:
            i.w = regs(ops[0])
            for o in ops[1:]: i.r |= regs(o)
        else:
            for o in ops: i.r |= regs(o)
        return i
    if op.startswith(("buffer_", "global_", "flat_")):
        i.kind = "vmem"
        lds = (" lds" in " " + mods) or "_lds_" in op
        if lds: i.m0use = True
        if "load" in op and not lds:
            i.w = regs(ops[0])
            for o in ops[1:]: i.r |= regs(o)
        elif "atomic" in op and ("sc0" in mods.split()):
            i.w = regs(ops[0])
            if op.startswith("buffer"): i.r |= regs(ops[0])
            for o in ops[1:]: i.r |= regs(o)
        else:
            for o in ops: i.r |= regs(o)
            if "store" in op and ("x3" in op or "x4" in op):
                i.wide = regs(ops[1] if op.startswith(("global", "flat")) else ops[0])
        return i
    if op.startswith("buffer_wbl2") or op.startswith("buffer_inv"):
        i.kind = "vmem"; return i
    raise ValueError("unknown instr: " + line)

def need(p, c):
    n = 0
    isv = lambda s: {x for x in s if x[0] in "va" and x not in ("vcc",)}
    iss = lambda s: {x for x in s if x[0] == "s" or x == "vcc"}
    if p.kind == "valu":
        wv = isv(p.w); ws = iss(p.w)
        if c.kind == "valu":
            if wv & c.r:
                if c.dpp: n = max(n, 2)
                if c.perm: n = max(n, 2)
                if c.rdlane: n = max(n, 1)
                if p.trans and not c.trans: n = max(n, 1)
                if p.moved: n = max(n, 1)
            if p.moved and (wv & c.w): n = max(n, 1)
            if ws & c.r: n = max(n, 2)
            if ws & c.lanesel: n = max(n, 4)
            if "exec" in p.w:
                if c.dpp: n = max(n, 5)
                if c.rdlane or c.perm: n = max(n, 4)
        if c.kind == "mfma":
            if wv & c.r: n = max(n, 2)
            if "exec" in p.w: n = max(n, 4)
        if c.kind == "vmem" and (ws & c.r): n = max(n, 5)
        if p.dot:
            if c.kind == "valu" and c.dot == p.dot:
                if wv & (c.r - c.dotC): n = max(n, 3)
            elif wv & (c.r | c.w): n = max(n, 3)
    if p.kind == "mfma":
        big = {8: 12, 4: 8, 2: 6}[p.passes]; ov = {8: 10, 4: 6, 2: 4}[p.passes]; war = {8: 7, 4: 3, 2: 3}[p.passes]
        if c.kind == "mfma":
            if p.D & c.A: n = max(n, big)
            if p.D & c.C:
                if not (p.Dtok == c.Ctok and p.passes == c.passes): n = max(n, ov)
                elif p.passes == 2: n = max(n, 2)
            elif p.D & c.D: n = max(n, big)
        elif c.kind in ("valu", "ds", "vmem"):
            if p.D & (c.r | c.w): n = max(n, big)
            if c.kind == "valu" and (p.C & c.w): n = max(n, war)
    if p.kind == "vmem" and p.wide:
        if c.kind == "valu" and (p.wide & c.w): n = max(n, 2)
        elif c.kind in ("ds", "vmem", "mfma") and (p.wide & c.w): n = max(n, 1)
    if p.kind == "salu" and "m0" in p.w and c.m0use: n = max(n, 1)
    return n

WIN = 14
def fix(lines, verbose=False):
    ins = [parse(l) for l in lines]
    labels = {x.label: k for k, x in enumerate(ins) if x.kind == "label"}
    out = []
    hist = []
    pend = {}
    nn = 0
    def adv(h, ws): return [(p, d + ws) for (p, d) in h if d + ws < WIN]
    dead = False
    for k, c in enumerate(ins):
        if c.kind == "label":
            if dead: hist = []
            for h in pend.pop(c.label, []): hist = hist + h
            dead = False
            out.append(c.line); continue
        if c.kind == "none":
            out.append(c.line); continue
        req = 0
        for (p, d) in hist:
            r = need(p, c) - d
            if r > req: req = r; why = p
        while req > 0:
            t = min(req, 8)
            out.append(f"  s_nop {t-1}"); hist = adv(hist, t); req -= t; nn += 1
        out.append(c.line)
        hist = adv(hist, c.ws) + [(c, 0)]
        if c.kind == "branch":
            tgt = labels.get(c.target)
            if tgt is None: raise ValueError("unknown label " + c.target)
            if tgt > k:
                pend.setdefault(c.target, []).append(list(hist))
            else:
                h = list(hist); j = tgt
                while h and j < len(ins):
                    x = ins[j]; j += 1
                    if x.ws == 0: continue
                    for (p, d) in h:
                        if need(p, x) > d:
                            raise ValueError(f"hazard over back-edge: {p.line.strip()} -> {x.line.strip()}")
                    h = adv(h, x.ws)
                    if x.kind == "branch" and x.op == "s_branch": break
            if c.op == "s_branch": dead = True
        if c.kind == "salu" and c.op == "s_endpgm": dead = True
    return out
```

```python
from common import *
OPT = {}
import common, math
import numpy as np
LOG2E_HI = float(np.float32(math.log2(math.e)))
LOG2E_LO = math.log2(math.e) - LOG2E_HI
LN2 = math.log(2.0)
KG_STRIDE = 272
KG_WAVE = 64 * KG_STRIDE
LN_BASE = 4 * KG_WAVE
LN_STRIDE = 2112

def exp_acc(k, dst, x, t0, t1):
    k(f"""
    v_mul_f32 v{t0}, s40, v{x}
    v_fma_f32 v{t1}, v{x}, s40, -v{t0}
    v_exp_f32 v{dst}, v{t0}
    v_fmac_f32 v{t1}, s41, v{x}
    v_mul_f32 v{t1}, s42, v{t1}
    v_fmac_f32 v{dst}, v{dst}, v{t1}
    """)

def gen_k1():
    k = Kern("k1_kernel", 256, 768, lds=LN_BASE + 8 * LN_STRIDE, vgpr=128, sgpr=100)
    k("""
    s_cmp_ge_u32 s2, 256
    s_cbranch_scc1 k1_end
    s_load_dwordx16 s[4:19], s[0:1], 0
    s_load_dwordx2 s[20:21], s[0:1], 104
    """)
    spin_t0(k)
    stamp0(k)
    k("""
    v_lshrrev_b32 v1, 6, v0
    v_and_b32 v0, 63, v0
    v_readfirstlane_b32 s3, v1
    s_cmp_ge_u32 s3, 8
    s_cbranch_scc1 k1_kgen
    """)
    k(f"""
    s_lshr_b32 s22, s2, 2
    s_lshl_b32 s22, s22, 5
    s_and_b32 s23, s2, 3
    s_add_u32 s22, s22, s23
    s_lshl_b32 s23, s3, 2
    s_add_u32 s22, s22, s23
    s_lshl_b32 s22, s22, 10
    v_lshlrev_b32 v1, 4, v0
    v_add_u32 v2, s22, v1
    s_waitcnt lgkmcnt(0)
    global_load_dwordx4 v[4:7], v2, s[4:5]
    s_mul_i32 s22, s3, {LN_STRIDE}
    s_add_u32 s22, s22, {LN_BASE}
    v_lshlrev_b32 v3, 5, v0
    v_add_u32 v3, s22, v3
    v_bfe_u32 v2, v0, 2, 2
    v_mul_u32_u24 v2, {LN_STRIDE}, v2
    v_lshrrev_b32 v8, 4, v0
    v_lshlrev_b32 v8, 5, v8
    v_and_b32 v9, 3, v0
    v_lshlrev_b32 v9, 3, v9
    v_add3_u32 v2, v2, v8, v9
    s_lshl_b32 s22, s3, 8
    s_add_u32 s22, s22, {LN_BASE}
    v_add_u32 v2, s22, v2
    s_lshl_b32 s22, s2, 14
    s_lshl_b32 s23, s3, 11
    s_add_u32 s22, s22, s23
    v_add_u32 v1, s22, v1
    s_mov_b32 s24, 0xffff0000
    s_mov_b32 s25, {f2h(1.0/512)}
    s_waitcnt vmcnt(0)
    """)
    spin_mark(k, "s[20:21]")
    stamp(k, 0)
    for i in range(4):
        k(f"v_lshlrev_b32 v{8+2*i}, 16, v{4+i}\nv_and_b32 v{9+2*i}, s24, v{4+i}")
    k("""
    v_pk_add_f32 v[16:17], v[8:9], v[10:11]
    v_pk_add_f32 v[18:19], v[12:13], v[14:15]
    v_pk_add_f32 v[16:17], v[16:17], v[18:19]
    v_add_f32 v16, v16, v17
    """)
    wave_sum(k, 16, 26)
    k("""
    v_mov_b32 v20, s26
    v_mul_f32 v20, s25, v20
    """)
    for i in range(4):
        k(f"v_pk_add_f32 v[{22+2*i}:{23+2*i}], v[{8+2*i}:{9+2*i}], v[20:21] op_sel_hi:[1,0] neg_lo:[0,1] neg_hi:[0,1]")
    k("""
    v_pk_mul_f32 v[16:17], v[22:23], v[22:23]
    v_pk_fma_f32 v[16:17], v[24:25], v[24:25], v[16:17]
    v_pk_fma_f32 v[16:17], v[26:27], v[26:27], v[16:17]
    v_pk_fma_f32 v[16:17], v[28:29], v[28:29], v[16:17]
    v_cvt_pk_bf16_f32 v20, v20, v20
    v_add_f32 v16, v16, v17
    v_lshlrev_b32 v20, 16, v20
    """)
    wave_sum(k, 16, 27)
    for i in range(4):
        k(f"v_pk_add_f32 v[{22+2*i}:{23+2*i}], v[{8+2*i}:{9+2*i}], v[20:21] op_sel_hi:[1,0] neg_lo:[0,1] neg_hi:[0,1]")
    k(f"""
    v_mov_b32 v18, s27
    v_mul_f32 v18, s25, v18
    v_cvt_pk_bf16_f32 v18, v18, v18
    v_lshlrev_b32 v18, 16, v18
    v_add_f32 v18, {f2h(1e-5)}, v18
    v_cvt_pk_bf16_f32 v18, v18, v18
    v_lshlrev_b32 v18, 16, v18
    v_sqrt_f32 v18, v18
    """)
    for i in range(4):
        k(f"v_cvt_pk_bf16_f32 v{30+i}, v{22+2*i}, v{23+2*i}")
    k("""
    v_cvt_pk_bf16_f32 v18, v18, v18
    v_lshlrev_b32 v18, 16, v18
    v_rcp_f32 v18, v18
    """)
    for i in range(4):
        k(f"v_lshlrev_b32 v{22+2*i}, 16, v{30+i}\nv_and_b32 v{23+2*i}, s24, v{30+i}")
    for i in range(4):
        k(f"v_pk_mul_f32 v[{22+2*i}:{23+2*i}], v[{22+2*i}:{23+2*i}], v[18:19] op_sel_hi:[1,0]")
    for i in range(4):
        k(f"v_cvt_pk_bf16_f32 v{8+2*i}, v{22+2*i}, v{23+2*i}\nv_mov_b32 v{9+2*i}, v{4+i}")
    k("""
    ds_write_b128 v3, v[8:11]
    ds_write_b128 v3, v[12:15] offset:16
    s_waitcnt lgkmcnt(0)
    """)
    stamp(k, 1)
    k("s_barrier")
    for j in range(2):
        for hf in range(2):
            k(f"ds_read_b64_tr_b16 v[{8+4*j+2*hf}:{9+4*j+2*hf}], v2 offset:{hf*4*LN_STRIDE + j*128}")
    k("""
    s_waitcnt lgkmcnt(2)
    global_store_dwordx4 v1, v[8:11], s[20:21] sc1
    s_waitcnt lgkmcnt(0)
    global_store_dwordx4 v1, v[12:15], s[20:21] offset:1024 sc1
    """)
    stamp_end(k, 0, 2, ws="s[20:21]")
    k("s_endpgm")
    k(f"""
    k1_kgen:
    s_sub_u32 s22, s3, 8
    s_lshr_b32 s23, s22, 1            ; ch
    s_and_b32 s24, s22, 1             ; mh
    s_lshl_b32 s25, s2, 1
    s_add_u32 s25, s25, s23           ; d
    s_lshl_b32 s26, s25, 8
    s_lshl_b32 s27, s24, 7
    s_add_u32 s26, s26, s27
    v_lshlrev_b32 v1, 1, v0
    v_add_u32 v1, s26, v1
    s_lshl_b32 s27, s2, 2
    s_waitcnt lgkmcnt(0)
    global_load_ushort v4, v1, s[6:7]
    global_load_ushort v5, v1, s[8:9]
    global_load_ushort v6, v1, s[10:11]
    global_load_ushort v7, v1, s[12:13]
    s_load_dword s28, s[14:15], s27
    s_load_dword s29, s[16:17], s27
    s_mul_i32 s30, s22, {KG_WAVE}
    s_mov_b32 m0, s30
    s_mov_b32 s40, {f2h(LOG2E_HI)}
    s_mov_b32 s41, {f2h(LOG2E_LO)}
    s_mov_b32 s42, {f2h(LN2)}
    ; operand read address v2 = base + (l%32)*272 + 16*(l/32)
    v_and_b32 v2, 31, v0
    v_mul_u32_u24 v2, {KG_STRIDE}, v2
    v_lshrrev_b32 v3, 5, v0
    v_lshlrev_b32 v3, 4, v3
    v_add3_u32 v2, v2, v3, s30
    v_mov_b32 v8, 0x3f80
    ds_write_addtid_b32 v8 offset:{32*KG_STRIDE}
    s_lshl_b32 s31, s23, 4
    s_waitcnt lgkmcnt(0)
    s_lshr_b32 s28, s28, s31
    s_lshl_b32 s28, s28, 16
    s_lshr_b32 s29, s29, s31
    s_lshl_b32 s29, s29, 16
    v_mov_b32 v9, s28
    """)
    exp_acc(k, 10, 9, 11, 12)
    k("""
    v_cvt_pk_bf16_f32 v10, v10, v10
    v_lshlrev_b32 v10, 16, v10        ; dt
    v_add_f32 v11, v10, v10           ; 2dt
    s_waitcnt vmcnt(0)
    """)
    stamp(k, 0)
    k("""
    v_lshlrev_b32 v4, 16, v4
    v_lshlrev_b32 v5, 16, v5
    v_lshlrev_b32 v6, 16, v6
    v_lshlrev_b32 v7, 16, v7
    """)
    exp_acc(k, 12, 4, 13, 14)
    X0 = 20
    k(f"""
    v_mul_f32 v5, v5, v10             ; ai
    v_mul_f32 v{X0}, v6, v11
    v_mul_f32 v{X0+1}, v7, v11
    v_cvt_pk_bf16_f32 v12, v12, v12
    v_lshlrev_b32 v12, 16, v12
    v_mul_f32 v12, v12, v10           ; -ar
    v_mul_f32 v12, -v12, s40
    v_mul_f32 v5, 0.15915494, v5
    """)
    E1, W, Z = 14, 16, 18
    for (dst, P, t) in ((E1, 1.0, 6), (W, 8.0, 8), (Z, 256.0, 10)):
        if P == 1.0:
            k(f"v_fract_f32 v{t}, v5\nv_exp_f32 v{t+1}, v12")
        else:
            k(f"v_mul_f32 v{t}, {f2h(P)}, v5\nv_mul_f32 v{t+1}, {f2h(P)}, v12\nv_fract_f32 v{t}, v{t}\nv_exp_f32 v{t+1}, v{t+1}")
        k(f"v_cos_f32 v{dst}, v{t}\nv_sin_f32 v{dst+1}, v{t}")
    for (dst, t) in ((E1, 6), (W, 8), (Z, 10)):
        k(f"v_pk_mul_f32 v[{dst}:{dst+1}], v[{dst}:{dst+1}], v[{t}:{t+1}] op_sel:[0,1] op_sel_hi:[1,1]")
    nxt = [X0 + 2]
    def alloc():
        r = nxt[0]; nxt[0] += 2; return r
    tmp = [4, 6, 8, 10]; ti = [0]
    cv = [12, 13, 2 + 1]
    ci = [0]
    def T():
        ti[0] = (ti[0] + 1) % 4; return tmp[ti[0]]
    def emitX(reg, rows):
        c = cv[ci[0] % 3]; ci[0] += 1
        k(f"v_cvt_pk_bf16_f32 v{c}, v{reg}, -v{reg+1}")
        for m in rows: k(f"ds_write_addtid_b32 v{c} offset:{m*KG_STRIDE}")
    def emitY(reg, r):
        c = cv[ci[0] % 3]; ci[0] += 1
        k(f"v_cvt_pk_bf16_f32 v{c}, v{reg}, v{reg+1}")
        k(f"ds_write_addtid_b32 v{c} offset:{(32+r)*KG_STRIDE}")
    X = {0: X0}
    rows = {0:[0],1:[1],2:[2],3:[3],4:[4],5:[5],6:[6],7:[7],256:[8],258:[9],260:[10,12],262:[13],264:[14],
            512:[16],516:[17],520:[18],768:[20],772:[21],776:[22],1024:[24],1032:[25],1280:[26],1288:[27],
            1536:[28],1544:[29],1792:[30],1800:[31]}
    E2 = alloc(); E4 = alloc()
    emitX(X0, rows[0]); emitY(W, 1)
    cmul(k, E2, E1, E1, T())
    plan = [(1,0,E1)]
    Y = {1: W}
    def mkX(P, src, f):
        X[P] = alloc(); cmul(k, X[P], X[src], f, T()); emitX(X[P], rows[P])
    def mkY(r, a, b):
        Y[r] = alloc(); cmul(k, Y[r], Y[a], Y[b], T()); emitY(Y[r], r)
    mkX(1, 0, E1)
    cmul(k, E4, E2, E2, T())
    k("s_barrier")
    mkX(2, 0, E2); mkX(3, 1, E2)
    for p in range(4): mkX(4 + p, p, E4)
    mkX(256, 0, Z); mkX(258, 2, Z); mkX(260, 4, Z); mkX(262, 6, Z); mkX(264, 256, W)
    mkX(512, 256, Z); mkX(516, 260, Z); mkX(520, 264, Z)
    mkX(768, 512, Z); mkX(772, 516, Z); mkX(776, 520, Z)
    mkX(1024, 768, Z); mkX(1032, 776, Z)
    for b in (1280, 1536, 1792): mkX(b, b - 256, Z); mkX(b + 8, b - 248, Z)
    nxt[0] = X0
    mkY(2, 1, 1); mkY(3, 2, 1); mkY(4, 2, 2)
    for r in range(5, 9): mkY(r, r - 4, 4)
    for r in range(9, 17): mkY(r, r - 8, 8)
    for r in range(17, 32): mkY(r, r - 16, 16)
    stamp(k, 1)
    for s in range(8):
        k(f"ds_read_b128 v[{32+8*s}:{35+8*s}], v2 offset:{32*s}")
        k(f"ds_read_b128 v[{36+8*s}:{39+8*s}], v2 offset:{32*KG_STRIDE + 32*s}")
    k(f"""
    v_lshlrev_b32 v4, 4, v0
    v_add_u32 v5, s30, v4
    s_xor_b32 s31, s22, 1
    s_mul_i32 s31, s31, {KG_WAVE}
    v_add_u32 v6, s31, v4
    v_and_b32 v7, 31, v0
    v_lshlrev_b32 v7, 4, v7
    s_lshl_b32 s31, s25, 12
    s_add_u32 s31, s31, {KW_OFF}
    v_add_u32 v7, s31, v7
    v_lshrrev_b32 v8, 5, v0           ; h
    """)
    for s in range(8):
        k(f"s_waitcnt lgkmcnt({14-2*s})")
        c = "0" if s == 0 else "v[96:111]"
        k(f"v_mfma_f32_32x32x16_bf16 v[96:111], v[{32+8*s}:{35+8*s}], v[{36+8*s}:{39+8*s}], {c}")
    k("""
    s_cmp_eq_u32 s24, 1
    s_cbranch_scc1 k1_mh1
    v_lshl_add_u32 v7, v8, 3, v7
    v_mov_b32 v9, s29
    v_cmp_eq_u32 vcc, 0, v0
    v_cndmask_b32 v9, 0, v9, vcc
    ds_write_b128 v5, v[104:107]
    ds_write_b128 v5, v[108:111] offset:1024
    s_waitcnt lgkmcnt(0)
    """)
    stamp(k, 2)
    k("""
    s_barrier
    ds_read_b128 v[32:35], v6
    ds_read_b128 v[36:39], v6 offset:1024
    v_add_f32 v96, v96, v9
    s_waitcnt lgkmcnt(1)
    v_pk_add_f32 v[96:97], v[96:97], v[32:33]
    v_pk_add_f32 v[98:99], v[98:99], v[34:35]
    v_cvt_pk_bf16_f32 v10, v96, v97
    v_cvt_pk_bf16_f32 v11, v98, v99
    global_store_dwordx2 v7, v[10:11], s[20:21] sc1
    s_waitcnt lgkmcnt(0)
    v_pk_add_f32 v[100:101], v[100:101], v[36:37]
    v_add_f32 v102, v102, v38
    v_cvt_pk_bf16_f32 v12, v100, v100
    v_cvt_pk_bf16_f32 v13, v101, v102
    global_store_dwordx2 v7, v[12:13], s[20:21] offset:512 sc1
    """)
    stamp_end(k, 0, 3, ws="s[20:21]")
    k("""
    s_endpgm
    k1_mh1:
    v_lshl_add_u32 v9, v8, 10, v7
    v_lshl_add_u32 v7, v8, 9, v7
    s_mov_b32 vcc_lo, 0xaaaaaaaa
    s_mov_b32 vcc_hi, 0xaaaaaaaa
    ds_write_b128 v5, v[96:99]
    ds_write_b128 v5, v[100:103] offset:1024
    s_waitcnt lgkmcnt(0)
    """)
    stamp(k, 2)
    k("""
    s_barrier
    ds_read_b128 v[32:35], v6
    ds_read_b128 v[36:39], v6 offset:1024
    s_waitcnt lgkmcnt(1)
    v_pk_add_f32 v[104:105], v[104:105], v[32:33]
    v_add_f32 v106, v106, v34
    v_cvt_pk_bf16_f32 v12, v104, v104
    v_cvt_pk_bf16_f32 v13, v104, v105
    v_cvt_pk_bf16_f32 v14, v105, v105
    v_cvt_pk_bf16_f32 v15, v106, v106
    global_store_dwordx4 v7, v[12:15], s[20:21] offset:1024 sc1
    s_waitcnt lgkmcnt(0)
    v_pk_add_f32 v[108:109], v[108:109], v[36:37]
    v_pk_add_f32 v[110:111], v[110:111], v[38:39]
    v_cndmask_b32 v24, v108, v109, vcc
    v_cndmask_b32 v25, v110, v111, vcc
    v_cvt_pk_bf16_f32 v16, v108, v108
    v_cvt_pk_bf16_f32 v17, v108, v108
    v_cvt_pk_bf16_f32 v18, v24, v109
    v_cvt_pk_bf16_f32 v19, v109, v109
    v_cvt_pk_bf16_f32 v20, v110, v110
    v_cvt_pk_bf16_f32 v21, v110, v110
    v_cvt_pk_bf16_f32 v22, v25, v111
    v_cvt_pk_bf16_f32 v23, v111, v111
    global_store_dwordx4 v9, v[16:19], s[20:21] offset:2048 sc1
    global_store_dwordx4 v9, v[20:23], s[20:21] offset:2560 sc1
    """)
    stamp_end(k, 0, 3, ws="s[20:21]")
    k("""
    k1_end:
    s_endpgm
    """)
    return k
```

```python
from common import *
OPT = {}
UXL = 2048
KL = UXL + 16384
KSTR = 4160
SP = KL + 2 * KSTR
SPSTR = 2080
WST = SP + 2 * SPSTR + 64
WMOFF = 8192 + 64
WST2 = WST + 2 * WMOFF
LDS2 = WST2 + 8192

class Sched:
    def __init__(self, k):
        self.k = k; self.n = 0; self.pos = {}; self.done = -1
    def ds(self, txt, tag=None):
        self.k(txt);
        if tag is not None: self.pos[tag] = self.n
        self.n += 1
    def wait(self, *tags):
        p = max(self.pos[t] for t in tags)
        if p <= self.done: return
        c = self.n - 1 - p
        assert c <= 15, c
        self.k(f"s_waitcnt lgkmcnt({c})"); self.done = p

def conv_body(k, tiles, look=10):
    ACC = lambda ti: 64 + 16 * ti
    S = Sched(k)
    mf = []
    for p in range(-3, 4 * max(tiles) + 1):
        for ti, c in enumerate(tiles):
            n = 4 * c - p
            if 0 <= n <= 31: mf.append((p, ti, n))
    loads = []; seen = set()
    for idx, (p, ti, n) in enumerate(mf):
        if ("B", p) not in seen: seen.add(("B", p)); loads.append((idx, ("B", p)))
        if ("A", n) not in seen:
            seen.add(("A", n)); loads.append((idx, ("A0", n))); loads.append((idx, ("A1", n)))
    lastuse = {}
    for idx, (p, ti, n) in enumerate(mf): lastuse[p] = idx
    NB = 4
    def issue(l):
        kind, x = l
        if kind == "B":
            r = 16 + 4 * ((x + 3) % NB)
            S.ds(f"ds_read_b128 v[{r}:{r+3}], v{2 + (x & 1)} offset:{512*(x+3)}", l)
        else:
            hf = int(kind[1])
            S.ds(f"ds_read_b64_tr_b16 a[{4*x+2*hf}:{4*x+2*hf+1}], v4 offset:{128*x + 32*(1-hf)}", l)
    li = 0
    fill = []
    for idx, (p, ti, n) in enumerate(mf):
        need_pos = max(j for j, (i2, _) in enumerate(loads) if i2 <= idx)
        cnt = 0
        while li < len(loads) and (li <= need_pos or (li <= need_pos + look and (idx == 0 or cnt < 3))):
            i2, l = loads[li]
            if l[0] == "B" and l[1] - NB >= -3 and lastuse[l[1] - NB] >= idx: break
            if S.n - 1 - max(S.pos.get(("B", p), S.n), S.pos.get(("A1", n), S.n)) >= 14: break
            issue(l); li += 1; cnt += 1
        assert li > need_pos
        S.wait(("B", p), ("A1", n))
        r = 16 + 4 * ((p + 3) % NB)
        a = ACC(ti)
        cc = "0" if p == -3 else f"v[{a}:{a+15}]"
        k(f"v_mfma_f32_32x32x16_bf16 v[{a}:{a+15}], a[{4*n}:{4*n+3}], v[{r}:{r+3}], {cc}")
        if n == 0:
            c = tiles[ti]
            ep = [f"v_mov_b32 v{32+ti}, 0"]
            for m in range(1, 4):
                for j in range(4):
                    ep.append(f"v_add_f32_dpp v{a+4*j}, v{a+4*j+m}, v{a+4*j} row_ror:{4*m} row_mask:0xf bank_mask:0x{(0xf<<m)&0xf:x}")
                for j in range(4):
                    d = a + 4 * (j + 1) if j < 3 else 32 + ti
                    ep.append(f"v_add_f32_dpp v{d}, v{a+4*j+m}, v{d} row_ror:{4*m} row_mask:0xf bank_mask:0x{(1<<m)-1:x}")
            for e in ep: fill.append((idx + 3, e, False))
            fill.append((idx + 3, f"ds_write_b32 v5, v{32+ti} offset:{256*c+16}", True))
            fill.append((idx + 3, f"ds_read_b64 v[{36+2*ti}:{37+2*ti}], v6 offset:{2048*c}", True))
        cnt = 0
        while fill and fill[0][0] <= idx and cnt < 5:
            _, t, isds = fill.pop(0)
            if isds: S.ds(t)
            else: k(t)
            cnt += 1
    for _, t, isds in fill:
        if isds: S.ds(t)
        else: k(t)
    k("s_waitcnt lgkmcnt(0)")
    stamp(k, 1)
    k("s_barrier")
    for ti, c in enumerate(tiles):
        k(f"ds_read_b32 v{32+ti}, v5 offset:{256*c}")
    for ti, c in enumerate(tiles):
        x = 36 + 2 * ti; t = 44 + 4 * ti; a = ACC(ti)
        k(f"""
        v_lshlrev_b32 v{t}, 16, v{x}
        v_and_b32 v{t+1}, s24, v{x}
        v_lshlrev_b32 v{t+2}, 16, v{x+1}
        v_and_b32 v{t+3}, s24, v{x+1}
        v_add_f32 v{t}, v{t}, v{a}
        v_add_f32 v{t+1}, v{t+1}, v{a+4}
        v_add_f32 v{t+2}, v{t+2}, v{a+8}
        v_add_f32 v{t+3}, v{t+3}, v{a+12}
        v_cvt_pk_bf16_f32 v{x+1}, v{t+2}, v{t+3}
        """)
    for ti, c in enumerate(tiles):
        x = 36 + 2 * ti; t = 44 + 4 * ti
        k(f"""
        s_waitcnt lgkmcnt({3-ti})
        v_add_f32 v{t}, v{t}, v{32+ti}
        v_cvt_pk_bf16_f32 v{x}, v{t}, v{t+1}
        s_mov_b32 s25, {H_OFF + 2*c*131072}
        buffer_store_dwordx2 v[{x}:{x+1}], v7, s[8:11], s25 offen sc1
        """)

def gen_k2():
    k = Kern("k2_kernel", 256, 384, lds=LDS2, vgpr=128, agpr=128, sgpr=100)
    k("""
    s_cmp_ge_u32 s2, 256
    s_cbranch_scc1 k2_end
    s_load_dwordx2 s[8:9], s[0:1], 104
    s_load_dwordx4 s[12:15], s[0:1], 64
    s_load_dwordx2 s[16:17], s[0:1], 80
    """)
    spin(k, "k2", "s[8:9]")
    stamp0(k)
    k(f"""
    v_lshrrev_b32 v1, 6, v0
    v_and_b32 v0, 63, v0
    v_readfirstlane_b32 s3, v1
    s_mov_b32 s10, 0x10000000
    s_mov_b32 s11, 0x00020000
    s_cmp_ge_u32 s3, 4
    s_cbranch_scc1 k2_repack
    ; dp
    s_and_b32 s20, s2, 0xf0
    s_and_b32 s21, s2, 7
    s_lshl_b32 s21, s21, 1
    s_bfe_u32 s22, s2, 0x10003
    s_add_u32 s20, s20, s21
    s_add_u32 s20, s20, s22           ; dp
    s_lshr_b32 s21, s3, 1             ; ch
    s_and_b32 s22, s3, 1              ; par
    v_lshrrev_b32 v1, 2, v0
    v_lshlrev_b32 v1, 14, v1
    v_lshrrev_b32 v2, 4, v0
    v_xor_b32 v2, v2, v0
    v_and_b32 v2, 3, v2
    v_lshlrev_b32 v2, 4, v2
    s_lshl_b32 s23, s20, 6
    v_add3_u32 v1, v1, v2, s23
    v_lshlrev_b32 v2, 4, v0           ; lane*16
    s_lshl_b32 s23, s20, 1
    s_add_u32 s23, s23, s21           ; d
    s_lshl_b32 s26, s23, 12
    s_lshl_b32 s27, s22, 11
    s_add_u32 s26, s26, s27
    s_add_u32 s26, s26, {KW_OFF}
    s_mul_i32 s28, s21, {KSTR}
    s_add_u32 s28, s28, {KL}          ; KL(ch)
    s_add_u32 s27, s27, s28
    s_add_u32 m0, s27, 64
    s_lshl_b32 s29, s3, 18            ; n = wave + 4*j
    s_lshl_b32 s30, s3, 10
    s_add_u32 s30, s30, {UXL}
    s_waitcnt lgkmcnt(0)
    buffer_load_dwordx4 v2, s[8:11], s26 offen lds
    buffer_load_dwordx4 v2, s[8:11], s26 offen offset:1024 lds
    """)
    for j in range(4):
        k(f"s_mov_b32 m0, s30\ns_add_u32 s30, s30, 4096\nbuffer_load_dwordx4 v1, s[8:11], s29 offen lds\ns_add_u32 s29, s29, {4*262144}")
    k(f"""
    v_mov_b32 v8, 0
    v_mov_b32 v9, 0
    v_lshlrev_b32 v10, 3, v0
    s_lshl_b32 s29, s3, 9
    v_add_u32 v10, s29, v10
    ds_write_b64 v10, v[8:9]
    v_and_b32 v10, 7, v0
    v_lshlrev_b32 v10, 3, v10
    v_add_u32 v10, s28, v10
    ds_write_b64 v10, v[8:9]
    s_mul_i32 s29, s21, {SPSTR}
    s_add_u32 s29, s29, {SP}
    v_and_b32 v10, 1, v0
    v_lshlrev_b32 v10, 3, v10
    v_add_u32 v10, s29, v10
    ds_write_b64 v10, v[8:9]
    v_lshrrev_b32 v8, 5, v0
    v_bfe_u32 v9, v0, 2, 2
    v_bfe_u32 v10, v0, 4, 1
    v_and_b32 v11, 3, v0
    v_lshl_add_u32 v10, v10, 2, v11   ; a_l
    v_sub_u32 v12, v10, v8            ; a_l-hh
    v_lshlrev_b32 v13, 8, v12
    v_lshl_add_u32 v13, v9, 6, v13
    v_add_u32 v13, {UXL - 1536}, v13
    v_and_b32 v14, 3, v12
    v_xor_b32 v14, s21, v14
    v_lshl_add_u32 v2, v14, 4, v13
    v_xor_b32 v14, 2, v14
    v_lshl_add_u32 v3, v14, 4, v13
    v_and_b32 v12, 1, v0
    v_lshlrev_b32 v12, 5, v12
    v_bfe_u32 v13, v0, 4, 1
    v_lshl_add_u32 v12, v13, 4, v12
    v_bfe_u32 v13, v0, 1, 1
    v_lshl_add_u32 v12, v13, 3, v12
    v_lshl_add_u32 v12, v8, 6, v12
    v_lshlrev_b32 v13, 3, v9
    v_sub_u32 v12, v12, v13
    s_add_u32 s28, s28, 32
    v_add_u32 v4, s28, v12
    v_lshl_add_u32 v12, v10, 1, v8
    v_lshlrev_b32 v12, 4, v12
    v_lshl_add_u32 v12, v9, 2, v12
    v_add_u32 v5, s29, v12
    s_add_u32 s29, s21, 2
    v_xor_b32 v12, s29, v11
    v_lshlrev_b32 v12, 4, v12
    v_lshl_add_u32 v12, v10, 8, v12
    v_lshl_add_u32 v12, v9, 6, v12
    v_lshl_add_u32 v12, v8, 3, v12
    v_add_u32 v6, {UXL}, v12
    s_and_b32 s29, s23, 3
    v_xor_b32 v12, s29, v11
    v_lshlrev_b32 v12, 6, v12
    v_lshl_add_u32 v12, v9, 4, v12
    v_lshl_add_u32 v12, v8, 3, v12
    v_bfe_u32 v13, v0, 4, 1
    v_lshl_add_u32 v12, v13, 17, v12
    s_lshl_b32 s29, s23, 8
    v_add_u32 v7, s29, v12
    s_mov_b32 s24, 0xffff0000
    s_waitcnt vmcnt(0) lgkmcnt(0)
    """)
    stamp(k, 0)
    k("""
    s_barrier
    s_cmp_eq_u32 s22, 1
    s_cbranch_scc1 k2_par1
    """)
    conv_body(k, [0, 3, 4, 7])
    stamp_end(k, 1, 2, ws="s[8:9]")
    k("s_endpgm\nk2_par1:")
    conv_body(k, [1, 2, 5, 6])
    stamp_end(k, 1, 2, ws="s[8:9]")
    k("s_endpgm")
    k(f"""
    k2_repack:
    s_cmp_ge_u32 s2, 224
    s_cbranch_scc1 k2_end
    s_and_b32 s20, s2, 7              ; kr
    s_lshr_b32 s21, s2, 3             ; fb
    s_cmp_eq_u32 s3, 5
    s_cbranch_scc1 k2_repack2
    v_lshrrev_b32 v1, 3, v0
    v_mul_u32_u24 v1, 3584, v1
    v_and_b32 v2, 7, v0
    v_lshl_add_u32 v1, v2, 4, v1
    s_mul_i32 s22, s20, {64*3584}
    s_lshl_b32 s23, s21, 7
    s_add_u32 s22, s22, s23
    s_mov_b32 s18, {512*3584}
    s_mov_b32 s19, 0x00020000
    s_mov_b32 s30, {512*3584}
    s_mov_b32 s31, 0x00020000
    s_mov_b32 s23, {WST}
    s_waitcnt lgkmcnt(0)
    s_mov_b32 s16, s12
    s_mov_b32 s17, s13
    s_mov_b32 s28, s14
    s_mov_b32 s29, s15
    """)
    for j in range(8):
        k(f"""
        s_mov_b32 m0, {WST + 1024*j}
        buffer_load_dwordx4 v1, s[16:19], s22 offen lds
        s_mov_b32 m0, {WST + WMOFF + 1024*j}
        buffer_load_dwordx4 v1, s[28:31], s22 offen lds
        s_add_u32 s22, s22, {8*3584}
        """)
    k(f"""
    v_bfe_u32 v2, v0, 1, 1
    v_mul_u32_u24 v2, {WMOFF}, v2
    v_lshrrev_b32 v3, 5, v0
    v_lshl_add_u32 v2, v3, 10, v2
    v_bfe_u32 v3, v0, 2, 2
    v_lshl_add_u32 v2, v3, 7, v2
    v_bfe_u32 v3, v0, 4, 1
    v_lshl_add_u32 v2, v3, 4, v2
    v_and_b32 v3, 1, v0
    v_lshl_add_u32 v2, v3, 3, v2
    v_add_u32 v2, {WST}, v2
    v_lshlrev_b32 v3, 4, v0
    s_mul_i32 s22, s20, {4*112*1024}
    s_lshl_b32 s23, s21, 12
    s_add_u32 s22, s22, s23
    s_add_u32 s22, s22, {WP_OFF}
    v_lshlrev_b32 v4, 2, v0
    s_mul_i32 s24, s20, {112*128}
    s_lshl_b32 s23, s21, 9
    s_add_u32 s24, s24, s23
    s_add_u32 s24, s24, {CSP_OFF}
    s_mov_b32 s25, 0x3f803f80
    v_mov_b32 v8, 0
    v_mov_b32 v9, 0
    v_mov_b32 v10, 0
    v_mov_b32 v11, 0
    s_barrier
    """)
    nst = 0
    for ks in range(4):
        k(f"s_waitcnt vmcnt({12 - 4*ks + nst})")
        if ks == 0: stamp(k, 0)
        for f in range(4):
            for hf in range(2):
                r = 16 + 16 * ks + 4 * f + 2 * hf
                k(f"ds_read_b64_tr_b16 v[{r}:{r+1}], v2 offset:{ks*2048 + hf*512 + f*32}")
        for f in range(4):
            r = 16 + 16 * ks + 4 * f
            k(f"s_waitcnt lgkmcnt({6-2*f})")
            k(f"buffer_store_dwordx4 v[{r}:{r+3}], v3, s[8:11], s22 offen offset:{1024*f} sc1"); nst += 1
        for q in range(4):
            for f in range(4):
                k(f"v_dot2c_f32_bf16 v{8+f}, s25, v{16+16*ks+4*f+q}")
        k(f"s_add_u32 s22, s22, {112*1024}")
    k("""
    v_permlane32_swap_b32 v8, v9
    v_permlane32_swap_b32 v10, v11
    v_add_f32 v8, v8, v9
    v_add_f32 v10, v10, v11
    buffer_store_dword v8, v4, s[8:11], s24 offen sc1
    buffer_store_dword v10, v4, s[8:11], s24 offen offset:256 sc1
    """)
    stamp_end(k, 1, 1, ws="s[8:9]")
    k(f"""
    s_endpgm
    k2_repack2:
    v_lshrrev_b32 v1, 3, v0
    v_lshlrev_b32 v1, 10, v1
    v_and_b32 v2, 7, v0
    v_lshl_add_u32 v1, v2, 4, v1
    s_lshl_b32 s22, s21, 16
    s_lshl_b32 s23, s20, 7
    s_add_u32 s22, s22, s23
    s_mov_b32 s18, {1792*1024}
    s_mov_b32 s19, 0x00020000
    s_waitcnt lgkmcnt(0)
    """)
    for j in range(8):
        k(f"""
        s_mov_b32 m0, {WST2 + 1024*j}
        buffer_load_dwordx4 v1, s[16:19], s22 offen lds
        s_add_u32 s22, s22, 8192
        """)
    k(f"""
    v_lshrrev_b32 v2, 5, v0
    v_lshlrev_b32 v2, 9, v2
    v_bfe_u32 v3, v0, 2, 2
    v_lshl_add_u32 v2, v3, 7, v2
    v_bfe_u32 v3, v0, 4, 1
    v_lshl_add_u32 v2, v3, 5, v2
    v_and_b32 v3, 3, v0
    v_lshl_add_u32 v2, v3, 3, v2
    v_add_u32 v2, {WST2}, v2
    v_lshlrev_b32 v3, 4, v0
    s_mul_i32 s22, s20, {2*112*1024}
    s_lshl_b32 s23, s21, 12
    s_add_u32 s22, s22, s23
    s_add_u32 s22, s22, {WD_OFF}
    s_add_u32 s23, s22, {112*1024}
    s_barrier
    """)
    nst = 0
    for fs in range(4):
        k(f"s_waitcnt vmcnt({6 - 2*fs + nst})")
        if fs == 0: stamp(k, 0)
        for dl in range(2):
            for hf in range(2):
                r = 16 + 8 * fs + 4 * dl + 2 * hf
                k(f"ds_read_b64_tr_b16 v[{r}:{r+1}], v2 offset:{fs*2048 + hf*1024 + dl*64}")
        for dl in range(2):
            r = 16 + 8 * fs + 4 * dl
            k(f"s_waitcnt lgkmcnt({2-2*dl})")
            k(f"buffer_store_dwordx4 v[{r}:{r+3}], v3, s[8:11], s{22+dl} offen offset:{1024*fs} sc1"); nst += 1
    stamp_end(k, 1, 1, ws="s[8:9]")
    k("""
    k2_end:
    s_endpgm
    """)
    return k
```

```python
from common import *
import math
SLOT = 22528
NS = 7
CS = NS * SLOT
ST = CS + 1024
LDS3 = ST + 1024
OPT = dict(stats=True)

def dma_ops(k=None):
    return [
        "s_add_u32 m0, s32, s34\nbuffer_load_dwordx4 v1, s[16:19], s31 offen lds",
        "buffer_load_dwordx4 v1, s[16:19], s31 offen offset:1024 lds\ns_add_u32 s31, s31, 8192",
        "s_add_u32 m0, s32, s33\nbuffer_load_dwordx4 v1, s[12:15], s30 offen lds",
        "buffer_load_dwordx4 v1, s[12:15], s30 offen offset:1024 lds",
        "buffer_load_dwordx4 v1, s[12:15], s30 offen offset:2048 lds",
        f"""s_mov_b32 exec_hi, 0
        buffer_load_dwordx4 v1, s[12:15], s30 offen offset:3072 lds
        s_mov_b32 exec_hi, -1
        s_add_u32 s30, s30, {2*112*1024}
        s_add_u32 s32, s32, {SLOT}
        s_cmp_eq_u32 s32, {NS*SLOT}
        s_cselect_b32 s32, 0, s32""",
    ]

def body(k, NT, t0, light):
    P, Q = 8, 28
    def reads(base, ks):
        r = [f"ds_read_b64_tr_b16 v[{base}:{base+1}], v3 offset:{14336 + ks*4096}",
             f"ds_read_b64_tr_b16 v[{base+2}:{base+3}], v3 offset:{14336 + ks*4096 + 1024}"]
        for i in range(NT):
            r.append(f"ds_read_b128 v[{base+4+4*i}:{base+7+4*i}], v2 offset:{ks*7168 + (t0+i)*1024}")
        return r
    nr = NT + 2
    split = {4: [2, 2, 2, 0], 3: [2, 2, 1]}[NT]
    def stats(base):
        if not (light and OPT["stats"]): return [[] for _ in range(NT)]
        o = []
        for q in range(4):
            o.append(f"v_dot2c_f32_bf16 v6, s35, v{base+q}")
            o.append(f"v_dot2c_f32_bf16 v7, v{base+q}, v{base+q}")
        return [o[0:3], o[3:6], o[6:8]]
    for r in reads(P, 0): k(r)
    lab = k.label("loop")
    k(f"s_mov_b32 s36, 16\n{lab}:")
    dm = dma_ops() if light else [""] * 6
    def phase(cur, nxt_reads, first_extra, dmas, isP):
        issued = 0
        st = stats(cur)
        for i in range(NT):
            k(f"s_waitcnt lgkmcnt({NT-1-i+issued})")
            a = 64 + 16 * i
            k(f"v_mfma_f32_32x32x16_bf16 v[{a}:{a+15}], v[{cur+4+4*i}:{cur+7+4*i}], v[{cur}:{cur+3}], v[{a}:{a+15}]")
            if i == 0 and first_extra: k(first_extra)
            for r in nxt_reads[issued:issued + split[i]]: k(r)
            issued += split[i]
            if i < len(dmas): k(dmas[i])
            for s in st[i]: k(s)
    phase(P, reads(Q, 1), None, dm[3:6], True)
    extra = (f"s_waitcnt vmcnt({6*(NS-3)})\n" if light else "") + f"""
    s_barrier
    s_add_u32 s37, s37, {SLOT}
    s_cmp_eq_u32 s37, {NS*SLOT}
    s_cselect_b32 s37, 0, s37
    v_add_u32 v2, s37, v4
    v_add_u32 v3, s37, v5
    """
    phase(Q, reads(P, 0), extra, dm[0:3], False)
    k(f"s_sub_u32 s36, s36, 1\ns_cmp_lg_u32 s36, 0\ns_cbranch_scc1 {lab}")

def epilogue(k, NT, t0):
    k(f"""
    v_rcp_f32 v48, v7
    s_waitcnt lgkmcnt(0)
    v_mul_f32 v48, {f2h(-math.log2(math.e))}, v48
    """)
    def csreads(i):
        b = 8 + 16 * (i & 1)
        for j in range(4): k(f"ds_read_b128 v[{b+4*j}:{b+4*j+3}], v2 offset:{(t0+i)*128 + 32*j}")
    csreads(0)
    for i in range(NT):
        if i + 1 < NT: csreads(i + 1)
        k(f"s_waitcnt lgkmcnt({4 if i+1 < NT else 0})")
        a = 64 + 16 * i; b = 8 + 16 * (i & 1)
        for j in range(8):
            k(f"v_pk_fma_f32 v[{a+2*j}:{a+2*j+1}], v[{b+2*j}:{b+2*j+1}], v[6:7], v[{a+2*j}:{a+2*j+1}] op_sel_hi:[1,0,1]")
        G = [a, a + 2, a + 8, a + 10]; U = [a + 4, a + 6, a + 12, a + 14]
        for g in G: k(f"v_pk_mul_f32 v[{g}:{g+1}], v[{g}:{g+1}], v[48:49] op_sel_hi:[1,0]")
        for g in G: k(f"v_exp_f32 v{g}, v{g}\nv_exp_f32 v{g+1}, v{g+1}")
        for g in G: k(f"v_pk_fma_f32 v[{g}:{g+1}], v[{g}:{g+1}], v[6:7], v[6:7] op_sel:[0,1,1] op_sel_hi:[1,1,1]")
        for g in G: k(f"v_rcp_f32 v{g}, v{g}\nv_rcp_f32 v{g+1}, v{g+1}")
        for g, u in zip(G, U): k(f"v_pk_mul_f32 v[{u}:{u+1}], v[{u}:{u+1}], v[{g}:{g+1}]")
        o = 52 + 4 * (i & 1)
        for j, u in enumerate(U): k(f"v_cvt_pk_bf16_f32 v{o+j}, v{u}, v{u+1}")
        k(f"buffer_store_dwordx4 v[{o}:{o+3}], v1, s[8:11], s38 offen offset:{(i&1)*2048} sc1")
        if i & 1: k("s_add_u32 s38, s38, 4096")

def gen_k3():
    k = Kern("k3_kernel", 256, 512, lds=LDS3, vgpr=128, sgpr=100)
    k("""
    s_cmp_ge_u32 s2, 256
    s_cbranch_scc1 k3_end
    s_load_dwordx2 s[8:9], s[0:1], 104
    """)
    spin(k, "k3", "s[8:9]")
    stamp0(k)
    k(f"""
    v_lshrrev_b32 v1, 6, v0
    v_and_b32 v0, 63, v0
    v_readfirstlane_b32 s3, v1
    s_mov_b32 s10, 0x10000000
    s_mov_b32 s11, 0x00020000
    s_and_b32 s20, s2, 1
    s_lshl_b32 s20, s20, 3
    s_bfe_u32 s21, s2, 0x30003
    s_add_u32 s20, s20, s21           ; tt
    s_bfe_u32 s21, s2, 0x20001
    s_lshl_b32 s21, s21, 2
    s_lshr_b32 s22, s2, 6
    s_add_u32 s21, s21, s22           ; ft
    s_and_b32 s22, s3, 3
    v_lshlrev_b32 v1, 4, v0
    s_mov_b32 s14, {32*112*1024}
    s_mov_b32 s15, 0x00020000
    s_mov_b32 s18, 131072
    s_mov_b32 s19, 0x00020000
    s_lshl_b32 s23, s20, 17
    s_add_u32 s23, s23, {H_OFF}
    s_lshr_b32 s24, s22, 1
    s_and_b32 s25, s22, 1
    s_mul_i32 s33, s22, 3584
    s_mul_i32 s30, s24, {112*1024}
    s_mul_i32 s26, s25, 3584
    s_add_u32 s30, s30, s26
    s_mul_i32 s26, s21, 7168
    s_add_u32 s30, s30, s26
    s_lshl_b32 s31, s22, 11
    s_add_u32 s34, s31, 14336
    s_mov_b32 s32, 0
    s_cmp_lt_u32 s3, 4
    s_waitcnt lgkmcnt(0)
    s_cbranch_scc1 k3_heavy0
    s_add_u32 s12, s8, {WP_OFF}
    s_addc_u32 s13, s9, 0
    s_add_u32 s16, s8, s23
    s_addc_u32 s17, s9, 0
    """)
    dm = dma_ops()
    for c in range(NS - 1):
        for i, d in enumerate(dm):
            if c == NS - 2 and i >= 3: break
            k(d)
    k(f"""
    s_branch k3_common
    k3_heavy0:
    v_lshlrev_b32 v2, 2, v0
    s_lshl_b32 s26, s3, 8
    s_mul_i32 s27, s21, 896
    s_add_u32 s27, s27, s26
    s_add_u32 s27, s27, {CSP_OFF}
    """)
    for i in range(8):
        k(f"buffer_load_dword v{8+i}, v2, s[8:11], s27 offen\ns_add_u32 s27, s27, {112*128}")
    k(f"""
    s_add_u32 s26, s26, {CS}
    v_add_u32 v2, s26, v2
    s_waitcnt vmcnt(0)
    v_pk_add_f32 v[8:9], v[8:9], v[10:11]
    v_pk_add_f32 v[12:13], v[12:13], v[14:15]
    v_pk_add_f32 v[8:9], v[8:9], v[12:13]
    v_add_f32 v8, v8, v9
    ds_write_b32 v2, v8
    k3_common:
    v_mov_b32 v4, v1
    v_lshrrev_b32 v5, 5, v0
    v_lshlrev_b32 v5, 11, v5
    v_bfe_u32 v6, v0, 2, 2
    v_lshl_add_u32 v5, v6, 8, v5
    v_xor_b32 v6, s22, v6
    v_lshl_add_u32 v5, v6, 6, v5
    v_bfe_u32 v6, v0, 4, 1
    v_lshl_add_u32 v5, v6, 5, v5
    v_and_b32 v6, 3, v0
    v_lshl_add_u32 v5, v6, 3, v5
    v_mov_b32 v2, v4
    v_mov_b32 v3, v5
    s_mov_b32 s37, 0
    s_mov_b32 s35, 0x3f803f80
    v_mov_b32 v6, 0
    v_mov_b32 v7, 0
    """)
    for i in range(32): k(f"v_mov_b64 v[{64+2*i}:{65+2*i}], 0")
    k(f"""
    s_lshl_b32 s38, s20, 1
    s_add_u32 s38, s38, s24
    s_mul_i32 s38, s38, 112
    s_mul_i32 s26, s21, 7
    s_add_u32 s38, s38, s26
    s_lshl_b32 s38, s38, 11
    s_lshl_b32 s26, s25, 9
    s_add_u32 s38, s38, s26
    s_add_u32 s38, s38, {HG_OFF}
    s_cmp_lt_u32 s3, 4
    s_cbranch_scc1 k3_heavy
    s_add_u32 s38, s38, {4*2048}
    s_waitcnt vmcnt({6*(NS-2)-3})
    """)
    stamp(k, 0)
    k("s_barrier")
    body(k, 3, 4, True)
    stamp(k, 1)
    k(f"""
    s_waitcnt lgkmcnt(0)
    v_mov_b32 v8, v6
    v_mov_b32 v9, v7
    v_permlane32_swap_b32 v6, v8
    v_permlane32_swap_b32 v7, v9
    v_add_f32 v6, v6, v8
    v_add_f32 v7, v7, v9
    v_mul_f32 v6, {f2h(1/512)}, v6
    v_mul_f32 v7, {f2h(1/512)}, v7
    v_fma_f32 v7, -v6, v6, v7
    v_max_f32 v7, 0, v7
    v_cvt_pk_bf16_f32 v6, -v6, v7
    v_and_b32 v7, 0xffff0000, v6
    v_lshlrev_b32 v6, 16, v6
    v_add_f32 v7, {f2h(1e-5)}, v7
    v_cvt_pk_bf16_f32 v7, v7, v7
    v_lshlrev_b32 v7, 16, v7
    v_sqrt_f32 v7, v7
    v_lshlrev_b32 v8, 3, v0
    v_cvt_pk_bf16_f32 v7, v7, v7
    v_lshlrev_b32 v7, 16, v7
    s_lshl_b32 s26, s22, 8
    s_add_u32 s26, s26, {ST}
    v_and_b32 v8, 0xff, v8
    v_add_u32 v8, s26, v8
    ds_write_b64 v8, v[6:7]
    s_waitcnt lgkmcnt(0)
    s_barrier
    """)
    def epi_addr():
        k(f"""
        v_lshrrev_b32 v2, 5, v0
        v_and_b32 v1, 31, v0
        v_lshlrev_b32 v1, 4, v1
        v_lshl_add_u32 v1, v2, 10, v1
        v_lshlrev_b32 v2, 4, v2
        v_add_u32 v2, {CS}, v2
        """)
    epi_addr()
    epilogue(k, 3, 4)
    stamp_end(k, 2, 2, ws="s[8:9]")
    k("""
    s_endpgm
    k3_heavy:
    s_waitcnt lgkmcnt(0)
    """)
    stamp(k, 0)
    k("s_barrier")
    body(k, 4, 0, False)
    stamp(k, 1)
    epi_addr()
    k(f"""
    v_lshlrev_b32 v8, 3, v0
    s_lshl_b32 s26, s22, 8
    s_add_u32 s26, s26, {ST}
    v_and_b32 v8, 0xff, v8
    v_add_u32 v8, s26, v8
    s_waitcnt lgkmcnt(0)
    s_barrier
    ds_read_b64 v[6:7], v8
    s_waitcnt lgkmcnt(0)
    """)
    epilogue(k, 4, 0)
    stamp_end(k, 2, 2, ws="s[8:9]")
    k("""
    k3_end:
    s_endpgm
    """)
    return k
```

```python
from common import *
CH = 32768
NSL = 4
HT = NSL * CH
LDS4 = HT + 8192
PSTR = 8208
def slot(c): return ((c + 1) % NSL) * CH

def gen_k4():
    k = Kern("k4_kernel", 256, 512, lds=LDS4, vgpr=96, agpr=112, sgpr=100)
    k("""
    s_cmp_ge_u32 s2, 256
    s_cbranch_scc1 k4_end
    s_load_dwordx2 s[8:9], s[0:1], 104
    s_load_dwordx2 s[12:13], s[0:1], 88
    """)
    spin(k, "k4", "s[8:9]")
    stamp0(k)
    k(f"""
    v_lshrrev_b32 v1, 6, v0
    v_and_b32 v0, 63, v0
    v_readfirstlane_b32 s3, v1
    s_mov_b32 s10, 0x10000000
    s_mov_b32 s11, 0x00020000
    s_mov_b32 s14, {2048*1024}
    s_mov_b32 s15, 0x00020000
    s_bfe_u32 s20, s2, 0x20001
    s_lshl_b32 s20, s20, 3
    s_bfe_u32 s21, s2, 0x30003
    s_add_u32 s20, s20, s21           ; t64
    s_and_b32 s21, s2, 1
    s_lshl_b32 s21, s21, 2
    s_lshr_b32 s22, s2, 6
    s_add_u32 s21, s21, s22           ; d64
    s_and_b32 s22, s3, 1              ; dh
    s_lshr_b32 s23, s3, 1             ; kq
    v_lshlrev_b32 v1, 4, v0
    s_mul_i32 s30, s20, 112
    s_mul_i32 s24, s23, 28
    s_add_u32 s30, s30, s24
    s_lshl_b32 s30, s30, 11
    s_lshl_b32 s25, s22, 12
    s_add_u32 s30, s30, s25
    s_add_u32 s30, s30, {HG_OFF}
    s_lshl_b32 s31, s3, 12
    s_lshl_b32 s32, s21, 1
    s_add_u32 s32, s32, s22
    s_mul_i32 s32, s32, 112
    s_add_u32 s32, s32, s24
    s_lshl_b32 s32, s32, 10
    s_add_u32 s32, s32, {WD_OFF}
    v_lshrrev_b32 v2, 3, v0
    v_bfe_u32 v3, v0, 4, 1
    s_and_b32 s25, s20, 1
    v_xor_b32 v3, s25, v3
    v_lshlrev_b32 v3, 7, v3
    v_lshl_add_u32 v2, v2, 8, v3
    v_and_b32 v3, 7, v0
    v_lshl_add_u32 v2, v3, 4, v2
    s_lshr_b32 s33, s20, 1
    s_lshl_b32 s33, s33, 17
    s_lshl_b32 s25, s21, 14
    s_add_u32 s33, s33, s25
    s_lshl_b32 s25, s3, 11
    s_add_u32 s33, s33, s25
    s_add_u32 s33, s33, {H_OFF}
    s_lshl_b32 s25, s3, 10
    s_waitcnt lgkmcnt(0)
    """)
    order = []
    def dma(c):
        k(f"s_add_u32 m0, s31, {slot(c)}")
        for i in range(4):
            k(f"buffer_load_dwordx4 v1, s[8:11], s30 offen offset:{1024*i} lds"); order.append(("c", c))
        k("s_add_u32 s30, s30, 8192")
    def wd(g):
        for i in range(4):
            s = 4 * g + i
            k(f"buffer_load_dwordx4 a[{4*s}:{4*s+3}], v1, s[8:11], s32 offen offset:{1024*i}"); order.append(("w", g))
        k("s_add_u32 s32, s32, 4096")
    for c in range(4):
        dma(c); wd(c)
        if c == 0:
            k(f"s_add_u32 m0, s25, {HT}\nbuffer_load_dwordx4 v2, s[8:11], s33 offen lds"); order.append(("c", 0))
    for g in range(4, 7): wd(g)
    def vwait(tags):
        p = max(i for i, t in enumerate(order) if t in tags)
        k(f"s_waitcnt vmcnt({len(order)-1-p})")
    k(f"""
    v_lshrrev_b32 v4, 5, v0
    v_and_b32 v5, 31, v0
    v_lshlrev_b32 v2, 4, v5
    v_lshl_add_u32 v2, v4, 10, v2
    s_lshl_b32 s24, s23, 13
    v_add_u32 v2, s24, v2
    v_add_u32 v3, 65536, v2
    s_and_b32 s24, s23, 1
    s_lshl_b32 s24, s24, 4
    v_lshlrev_b32 v6, 3, v4
    v_add_u32 v6, s24, v6
    v_sub_u32 v6, v5, v6              ; i
    v_mov_b32 v7, 0x3f80
    v_mov_b32 v12, 0x3f800000
    """)
    for j in range(4):
        k(f"""
        v_cmp_eq_u32 vcc, {2*j}, v6
        v_cmp_eq_u32 s[26:27], {2*j+1}, v6
        v_cndmask_b32 v{8+j}, 0, v7, vcc
        v_cndmask_b32 v{8+j}, v{8+j}, v12, s[26:27]
        """)
    k(f"""
    v_bfe_u32 v6, v0, 2, 2
    v_lshl_add_u32 v7, v4, 3, v6
    v_lshlrev_b32 v7, 7, v7
    v_and_b32 v6, 1, v6
    s_lshr_b32 s25, s23, 1
    v_xor_b32 v6, s25, v6
    v_lshl_add_u32 v7, v6, 6, v7
    v_bfe_u32 v6, v0, 4, 1
    v_lshl_add_u32 v7, v6, 5, v7
    v_and_b32 v6, 3, v0
    v_lshl_add_u32 v7, v6, 3, v7
    s_lshl_b32 s24, s24, 7
    s_lshl_b32 s26, s22, 12
    s_add_u32 s24, s24, s26
    s_add_u32 s24, s24, {HT}
    v_add_u32 v6, s24, v7
    """)
    for i in range(16): k(f"v_mov_b64 v[{64+2*i}:{65+2*i}], 0")
    k(f"""
    v_lshrrev_b32 v12, 4, v0
    s_lshl_b32 s24, s3, 2
    v_add_u32 v12, s24, v12           ; idx
    v_bfe_u32 v13, v0, 3, 1           ; h
    v_bfe_u32 v14, v0, 2, 1           ; dh'
    v_and_b32 v15, 3, v0
    v_lshlrev_b32 v4, 8, v12
    v_lshl_add_u32 v4, v13, 7, v4
    v_lshl_add_u32 v4, v15, 5, v4
    v_mul_u32_u24 v14, {PSTR}, v14
    v_add_u32 v4, v4, v14
    ; t = 64*t64 + 32z + 16h + 4r + j ; idx = 16z + 4j + r
    v_lshrrev_b32 v14, 4, v12
    v_lshlrev_b32 v5, 5, v14
    v_lshl_add_u32 v5, v13, 4, v5
    v_and_b32 v14, 3, v12
    v_lshl_add_u32 v5, v14, 2, v5
    v_bfe_u32 v14, v12, 2, 2
    v_add_u32 v5, v5, v14
    v_lshlrev_b32 v5, 10, v5
    v_and_b32 v14, 7, v0
    v_lshl_add_u32 v5, v14, 4, v5
    s_lshl_b32 s34, s20, 16
    s_lshl_b32 s24, s21, 7
    s_add_u32 s34, s34, s24
    s_mul_i32 s35, s3, {PSTR}
    """)
    def rd(c, s, z):
        r = 16 + 8 * s + 4 * z
        off = slot(c) + s * 2048 + z * 512
        base = "v2"
        if off >= 65536: base = "v3"; off -= 65536
        return f"ds_read_b128 v[{r}:{r+3}], {base} offset:{off}"
    for c in range(7):
        vwait([("c", c)])
        if c == 0: stamp(k, 0)
        k("s_barrier")
        if c == 0:
            k("ds_read_b64_tr_b16 v[12:13], v6\nds_read_b64_tr_b16 v[14:15], v6 offset:512")
        if c >= 1 and c + 3 < 7: dma(c + 3)
        for s in range(4):
            for z in range(2): k(rd(c, s, z))
        vwait([("w", c)])
        if c == 0:
            k(f"""
            s_waitcnt lgkmcnt(8)
            s_cmp_ge_u32 s23, 2
            s_cbranch_scc1 k4_z1
            v_mfma_f32_32x32x16_bf16 v[64:79], v[12:15], v[8:11], v[64:79]
            s_branch k4_z2
            k4_z1:
            v_mfma_f32_32x32x16_bf16 v[80:95], v[12:15], v[8:11], v[80:95]
            k4_z2:
            """)
        for s in range(4):
            for z in range(2):
                k(f"s_waitcnt lgkmcnt({7 - 2*s - z})")
                r = 16 + 8 * s + 4 * z; a = 64 + 16 * z; w = 4 * (4 * c + s)
                k(f"v_mfma_f32_32x32x16_bf16 v[{a}:{a+15}], v[{r}:{r+3}], a[{w}:{w+3}], v[{a}:{a+15}]")
    stamp(k, 1)
    k("s_mov_b32 m0, s35")
    for i in range(32): k(f"ds_write_addtid_b32 v{64+i} offset:{256*i}")
    k("s_waitcnt lgkmcnt(0)\ns_barrier")
    for q in range(4):
        k(f"ds_read_b128 v[{16+8*q}:{19+8*q}], v4 offset:{2*q*PSTR}")
        k(f"ds_read_b128 v[{20+8*q}:{23+8*q}], v4 offset:{2*q*PSTR+16}")
    k("s_waitcnt lgkmcnt(4)")
    for j in range(4): k(f"v_pk_add_f32 v[{16+2*j}:{17+2*j}], v[{16+2*j}:{17+2*j}], v[{24+2*j}:{25+2*j}]")
    k("s_waitcnt lgkmcnt(0)")
    for j in range(4): k(f"v_pk_add_f32 v[{32+2*j}:{33+2*j}], v[{32+2*j}:{33+2*j}], v[{40+2*j}:{41+2*j}]")
    for j in range(4): k(f"v_pk_add_f32 v[{16+2*j}:{17+2*j}], v[{16+2*j}:{17+2*j}], v[{32+2*j}:{33+2*j}]")
    for j in range(4): k(f"v_cvt_pk_bf16_f32 v{8+j}, v{16+2*j}, v{17+2*j}")
    k("buffer_store_dwordx4 v[8:11], v5, s[12:15], s34 offen")
    spin(k, "end", "s[8:9]")
    stamp_end(k, 3, 2, ws="s[8:9]")
    k("""
    k4_end:
    s_endpgm
    """)
    return k
```

```python
import sys
import common
args = sys.argv[1:]
common.DBG = "dbg" in args
import importlib
from asmlib import *
ks = []
n = 4
for a in args:
    if a.startswith("n="): n = int(a[2:])
from k1 import gen_k1
ks.append(gen_k1())
if n >= 2:
    from k2 import gen_k2
    ks.append(gen_k2())
if n >= 3:
    from k3 import gen_k3
    ks.append(gen_k3())
if n >= 4:
    from k4 import gen_k4
    ks.append(gen_k4())
out = [a for a in args if a.endswith(".s")][0]
open(out, "w").write(build_file(ks))
```

```python
import sys
import common
args = sys.argv[1:]
common.DBG = "dbg" in args
import importlib
from asmlib import *
ks = []
n = 4
for a in args:
    if a.startswith("n="): n = int(a[2:])
from k1 import gen_k1
ks.append(gen_k1())
if n >= 2:
    from k2 import gen_k2
    ks.append(gen_k2())
if n >= 3:
    from k3 import gen_k3
    ks.append(gen_k3())
if n >= 4:
    from k4 import gen_k4
    ks.append(gen_k4())
L = list(ks)
for a in args:
    if a.startswith("empty="):
        e = Kern("e_kernel", 256, 64, lds=0, vgpr=8, sgpr=16)
        e("s_endpgm")
        ks.append(e); L += [e] * int(a[6:])
out = [a for a in args if a.endswith(".s")][0]
open(out, "w").write(build_file(ks, L))
```

```python
from asmlib import *
MB = 1 << 20
UX_OFF = 0
KW_OFF = 4 * MB
H_OFF = 6 * MB
WP_OFF = 8 * MB
CSP_OFF = 12 * MB
HG_OFF = 13 * MB
WD_OFF = 21 * MB
CNT_OFF = 24 * MB
DBG_OFF = 32 * MB
DBG = False
NAME = "sequential_preLN__ssm_conv_s4d__glu_gated_glu__prompt"

def stamp0(k):
    k.nst = 0
    if common_dbg():
        k("s_memrealtime s[70:71]\ns_memtime s[72:73]")
def stamp(k, idx):
    if common_dbg():
        k(f"s_memtime s[{74+2*idx}:{75+2*idx}]")
def stamp_end(k, kidx, nst, ws="s[18:19]", wave="s3", vtmp=0):
    if not common_dbg(): return
    k(f"""
    s_waitcnt vmcnt(0) lgkmcnt(0)
    s_memtime s[{74+2*nst}:{75+2*nst}]
    s_memrealtime s[68:69]
    s_waitcnt lgkmcnt(0)
    s_lshl_b32 s66, s2, 4
    s_add_u32 s66, s66, {wave}
    s_lshl_b32 s66, s66, 6
    s_add_u32 s66, s66, {DBG_OFF + kidx*256*1024}
    v_mov_b32 v{vtmp+16}, s66
    v_mov_b32 v{vtmp}, s70
    v_mov_b32 v{vtmp+1}, s68
    """)
    for i in range(14):
        if i <= nst:
            k(f"s_sub_u32 s67, s{74+2*i}, s72\nv_mov_b32 v{vtmp+2+i}, s67")
        else:
            k(f"v_mov_b32 v{vtmp+2+i}, 0")
    k("s_mov_b64 exec, 1")
    for i in range(4):
        k(f"global_store_dwordx4 v{vtmp+16}, v[{vtmp+4*i}:{vtmp+4*i+3}], {ws} offset:{16*i}")

def wave_sum(k, v, s):
    for r in (8, 4, 2, 1):
        k(f"v_add_f32_dpp v{v}, v{v}, v{v} row_ror:{r} row_mask:0xf bank_mask:0xf")
    k(f"v_add_f32_dpp v{v}, v{v}, v{v} row_bcast:15 row_mask:0xa bank_mask:0xf")
    k(f"v_add_f32_dpp v{v}, v{v}, v{v} row_bcast:31 row_mask:0xc bank_mask:0xf")
    k(f"v_readlane_b32 s{s}, v{v}, 63")

def cmul(k, d, a, b, t):
    k(f"v_pk_mul_f32 v[{t}:{t+1}], v[{a}:{a+1}], v[{b}:{b+1}] op_sel:[1,1] op_sel_hi:[1,0]")
    k(f"v_pk_fma_f32 v[{d}:{d+1}], v[{a}:{a+1}], v[{b}:{b+1}], v[{t}:{t+1}] op_sel_hi:[0,1,1] neg_lo:[0,0,1]")

import struct
def f2h(x): return "0x%08x" % struct.unpack("<I", struct.pack("<f", x))[0]
def common_dbg():
    import sys
    return sys.modules["common"].DBG

SPIN = None
def spin_mark(k, ws):
    import sys
    if sys.modules["common"].SPIN is None: return
    lab = k.label("sm")
    k(f"""
    s_or_b32 s60, s2, s3
    s_cmp_lg_u32 s60, 0
    s_cbranch_scc1 {lab}
    v_mov_b32 v40, s62
    v_mov_b32 v41, {CNT_OFF}
    global_store_dword v41, v40, {ws} sc1
    {lab}:
    """)
def spin_t0(k):
    import sys
    if sys.modules["common"].SPIN is None: return
    k("s_memrealtime s[62:63]")
def spin(k, where, ws):
    import sys
    if sys.modules["common"].SPIN != where: return
    lab = k.label("sp")
    k(f"""
    s_waitcnt lgkmcnt(0) vmcnt(0)
    s_mov_b32 s61, {CNT_OFF}
    s_load_dword s60, {ws}, s61
    {lab}:
    s_memrealtime s[62:63]
    s_waitcnt lgkmcnt(0)
    s_sub_u32 s61, s62, s60
    s_cmp_lt_u32 s61, 6000
    s_cbranch_scc1 {lab}
    """)
```

```python
import sys
import common
args = sys.argv[1:]
common.DBG = "dbg" in args
for a in args:
    if a.startswith("spin="): common.SPIN = a[5:]
import importlib
from asmlib import *
ks = []
n = 4
for a in args:
    if a.startswith("n="): n = int(a[2:])
from k1 import gen_k1
ks.append(gen_k1())
if n >= 2:
    from k2 import gen_k2
    ks.append(gen_k2())
if n >= 3:
    from k3 import gen_k3
    ks.append(gen_k3())
if n >= 4:
    from k4 import gen_k4
    ks.append(gen_k4())
L = list(ks)
for a in args:
    if a.startswith("empty="):
        e = Kern("e_kernel", 256, 64, lds=0, vgpr=8, sgpr=16)
        e("s_endpgm")
        ks.append(e); L += [e] * int(a[6:])
for a in args:
    if a.startswith("front="):
        e = Kern("e_kernel", 256, 64, lds=0, vgpr=8, sgpr=16)
        e("s_endpgm")
        ks.append(e); L = [e] * int(a[6:]) + L
    if a.startswith("rep="):
        i = int(a[4:]); L = L[:i] + [L[i-1]] + L[i:]
out = [a for a in args if a.endswith(".s")][0]
open(out, "w").write(build_file(ks, L))
```

```python
from asmlib import *
MB = 1 << 20
UX_OFF = 0
KW_OFF = 4 * MB
H_OFF = 6 * MB
WP_OFF = 8 * MB
CSP_OFF = 12 * MB
HG_OFF = 13 * MB
WD_OFF = 21 * MB
CNT_OFF = 24 * MB
DBG_OFF = 32 * MB
FBS = 4352
DBG = False
NAME = "sequential_preLN__ssm_conv_s4d__glu_gated_glu__prompt"

def stamp0(k):
    k.nst = 0
    if common_dbg():
        k(f"s_memrealtime s[70:71]\n{TM()} s[72:73]")
def stamp(k, idx):
    if common_dbg():
        k(f"{TM()} s[{74+2*idx}:{75+2*idx}]")
def stamp_end(k, kidx, nst, ws="s[18:19]", wave="s3", vtmp=0):
    if not common_dbg(): return
    k(f"""
    s_waitcnt vmcnt(0) lgkmcnt(0)
    {TM()} s[{74+2*nst}:{75+2*nst}]
    s_memrealtime s[68:69]
    s_waitcnt lgkmcnt(0)
    s_lshl_b32 s66, s2, 4
    s_add_u32 s66, s66, {wave}
    s_lshl_b32 s66, s66, 6
    s_add_u32 s66, s66, {DBG_OFF + kidx*256*1024}
    v_mov_b32 v{vtmp+16}, s66
    v_mov_b32 v{vtmp}, s70
    v_mov_b32 v{vtmp+1}, s68
    """)
    for i in range(14):
        if i <= nst:
            k(f"s_sub_u32 s67, s{74+2*i}, s72\nv_mov_b32 v{vtmp+2+i}, s67")
        else:
            k(f"v_mov_b32 v{vtmp+2+i}, 0")
    k("s_mov_b64 exec, 1")
    for i in range(4):
        k(f"global_store_dwordx4 v{vtmp+16}, v[{vtmp+4*i}:{vtmp+4*i+3}], {ws} offset:{16*i}")

def wave_sum(k, v, s):
    for r in (8, 4, 2, 1):
        k(f"v_add_f32_dpp v{v}, v{v}, v{v} row_ror:{r} row_mask:0xf bank_mask:0xf")
    k(f"v_add_f32_dpp v{v}, v{v}, v{v} row_bcast:15 row_mask:0xa bank_mask:0xf")
    k(f"v_add_f32_dpp v{v}, v{v}, v{v} row_bcast:31 row_mask:0xc bank_mask:0xf")
    k(f"v_readlane_b32 s{s}, v{v}, 63")

def cmul(k, d, a, b, t):
    k(f"v_pk_mul_f32 v[{t}:{t+1}], v[{a}:{a+1}], v[{b}:{b+1}] op_sel:[1,1] op_sel_hi:[1,0]")
    k(f"v_pk_fma_f32 v[{d}:{d+1}], v[{a}:{a+1}], v[{b}:{b+1}], v[{t}:{t+1}] op_sel_hi:[0,1,1] neg_lo:[0,0,1]")

import struct
def f2h(x): return "0x%08x" % struct.unpack("<I", struct.pack("<f", x))[0]
def common_dbg():
    import sys
    return sys.modules["common"].DBG

SPIN = None
def spin_mark(k, ws):
    import sys
    if sys.modules["common"].SPIN is None: return
    lab = k.label("sm")
    k(f"""
    s_or_b32 s60, s2, s3
    s_cmp_lg_u32 s60, 0
    s_cbranch_scc1 {lab}
    v_mov_b32 v40, s62
    v_mov_b32 v41, {CNT_OFF}
    global_store_dword v41, v40, {ws} sc1
    {lab}:
    """)
def spin_t0(k):
    import sys
    if sys.modules["common"].SPIN is None: return
    k("s_memrealtime s[62:63]")
def spin(k, where, ws):
    import sys
    if sys.modules["common"].SPIN != where: return
    lab = k.label("sp")
    k(f"""
    s_waitcnt lgkmcnt(0) vmcnt(0)
    s_mov_b32 s61, {CNT_OFF}
    s_load_dword s60, {ws}, s61
    {lab}:
    s_memrealtime s[62:63]
    s_waitcnt lgkmcnt(0)
    s_sub_u32 s61, s62, s60
    s_cmp_lt_u32 s61, 6000
    s_cbranch_scc1 {lab}
    """)

RT = False
def TM():
    import sys
    return "s_memrealtime" if sys.modules["common"].RT else "s_memtime"
```

```python
from common import *
import math
SLOT = 22528
NS = 7
CS = NS * SLOT
ST = CS + 1024
LDS3 = ST + 1024
OPT = dict(stats=True, dma=True, mfma=True, reads=True)

def dma_ops(k=None):
    return [
        "s_add_u32 m0, s32, s34\nbuffer_load_dwordx4 v1, s[16:19], s31 offen lds",
        "buffer_load_dwordx4 v1, s[16:19], s31 offen offset:1024 lds\ns_add_u32 s31, s31, 8192",
        "s_add_u32 m0, s32, s33\nbuffer_load_dwordx4 v1, s[12:15], s30 offen lds",
        "buffer_load_dwordx4 v1, s[12:15], s30 offen offset:1024 lds",
        "buffer_load_dwordx4 v1, s[12:15], s30 offen offset:2048 lds",
        f"""s_mov_b32 exec_hi, 0
        buffer_load_dwordx4 v1, s[12:15], s30 offen offset:3072 lds
        s_mov_b32 exec_hi, -1
        s_add_u32 s30, s30, {2*112*1024}
        s_add_u32 s32, s32, {SLOT}
        s_cmp_eq_u32 s32, {NS*SLOT}
        s_cselect_b32 s32, 0, s32""",
    ]

def body(k, NT, t0, light):
    P, Q = 8, 28
    def reads(base, ks):
        r = [f"ds_read_b64_tr_b16 v[{base}:{base+1}], v3 offset:{14336 + ks*4096}",
             f"ds_read_b64_tr_b16 v[{base+2}:{base+3}], v3 offset:{14336 + ks*4096 + 1024}"]
        for i in range(NT):
            r.append(f"ds_read_b128 v[{base+4+4*i}:{base+7+4*i}], v2 offset:{ks*7168 + (t0+i)*1024}")
        return r
    nr = NT + 2
    split = {4: [2, 2, 2, 0], 3: [2, 2, 1]}[NT]
    def stats(base):
        if not (light and OPT["stats"]): return [[] for _ in range(NT)]
        o = []
        for q in range(4):
            o.append(f"v_dot2c_f32_bf16 v6, s35, v{base+q}")
            o.append(f"v_dot2c_f32_bf16 v7, v{base+q}, v{base+q}")
        return [o[0:3], o[3:6], o[6:8]]
    for r in reads(P, 0): k(r)
    lab = k.label("loop")
    k(f"s_mov_b32 s36, 16\n{lab}:")
    dm = dma_ops() if light and OPT["dma"] else [""] * 6
    def phase(cur, nxt_reads, first_extra, dmas, isP):
        issued = 0
        st = stats(cur)
        for i in range(NT):
            k(f"s_waitcnt lgkmcnt({NT-1-i+issued})")
            a = 64 + 16 * i
            if OPT["mfma"]: k(f"v_mfma_f32_32x32x16_bf16 v[{a}:{a+15}], v[{cur+4+4*i}:{cur+7+4*i}], v[{cur}:{cur+3}], v[{a}:{a+15}]")
            if i == 0 and first_extra: k(first_extra)
            for r in nxt_reads[issued:issued + split[i]]:
                if OPT["reads"]: k(r)
            issued += split[i]
            if i < len(dmas): k(dmas[i])
            for s in st[i]: k(s)
    phase(P, reads(Q, 1), None, dm[3:6], True)
    extra = (f"s_waitcnt vmcnt({6*(NS-3)})\n" if light else "") + f"""
    s_barrier
    s_add_u32 s37, s37, {SLOT}
    s_cmp_eq_u32 s37, {NS*SLOT}
    s_cselect_b32 s37, 0, s37
    v_add_u32 v2, s37, v4
    v_add_u32 v3, s37, v5
    """
    phase(Q, reads(P, 0), extra, dm[0:3], False)
    k(f"s_sub_u32 s36, s36, 1\ns_cmp_lg_u32 s36, 0\ns_cbranch_scc1 {lab}")

def epilogue(k, NT, t0):
    k(f"""
    v_rcp_f32 v48, v7
    s_waitcnt lgkmcnt(0)
    v_mul_f32 v48, {f2h(-math.log2(math.e))}, v48
    """)
    def csreads(i):
        b = 8 + 16 * (i & 1)
        for j in range(4): k(f"ds_read_b128 v[{b+4*j}:{b+4*j+3}], v2 offset:{(t0+i)*128 + 32*j}")
    csreads(0)
    for i in range(NT):
        if i + 1 < NT: csreads(i + 1)
        k(f"s_waitcnt lgkmcnt({4 if i+1 < NT else 0})")
        a = 64 + 16 * i; b = 8 + 16 * (i & 1)
        for j in range(8):
            k(f"v_pk_fma_f32 v[{a+2*j}:{a+2*j+1}], v[{b+2*j}:{b+2*j+1}], v[6:7], v[{a+2*j}:{a+2*j+1}] op_sel_hi:[1,0,1]")
        G = [a, a + 2, a + 8, a + 10]; U = [a + 4, a + 6, a + 12, a + 14]
        for g in G: k(f"v_pk_mul_f32 v[{g}:{g+1}], v[{g}:{g+1}], v[48:49] op_sel_hi:[1,0]")
        for g in G: k(f"v_exp_f32 v{g}, v{g}\nv_exp_f32 v{g+1}, v{g+1}")
        for g in G: k(f"v_pk_fma_f32 v[{g}:{g+1}], v[{g}:{g+1}], v[6:7], v[6:7] op_sel:[0,1,1] op_sel_hi:[1,1,1]")
        for g in G: k(f"v_rcp_f32 v{g}, v{g}\nv_rcp_f32 v{g+1}, v{g+1}")
        for g, u in zip(G, U): k(f"v_pk_mul_f32 v[{u}:{u+1}], v[{u}:{u+1}], v[{g}:{g+1}]")
        o = 52 + 4 * (i & 1)
        for j, u in enumerate(U): k(f"v_cvt_pk_bf16_f32 v{o+j}, v{u}, v{u+1}")
        k(f"buffer_store_dwordx4 v[{o}:{o+3}], v1, s[8:11], s38 offen offset:{(i&1)*2048} sc1")
        if i & 1: k("s_add_u32 s38, s38, 4096")

def gen_k3():
    k = Kern("k3_kernel", 256, 512, lds=LDS3, vgpr=128, sgpr=100)
    k("""
    s_cmp_ge_u32 s2, 256
    s_cbranch_scc1 k3_end
    s_load_dwordx2 s[8:9], s[0:1], 104
    """)
    spin(k, "k3", "s[8:9]")
    stamp0(k)
    k(f"""
    v_lshrrev_b32 v1, 6, v0
    v_and_b32 v0, 63, v0
    v_readfirstlane_b32 s3, v1
    s_mov_b32 s10, 0x10000000
    s_mov_b32 s11, 0x00020000
    s_and_b32 s20, s2, 1
    s_lshl_b32 s20, s20, 3
    s_bfe_u32 s21, s2, 0x30003
    s_add_u32 s20, s20, s21           ; tt
    s_bfe_u32 s21, s2, 0x20001
    s_lshl_b32 s21, s21, 2
    s_lshr_b32 s22, s2, 6
    s_add_u32 s21, s21, s22           ; ft
    s_and_b32 s22, s3, 3
    v_lshlrev_b32 v1, 4, v0
    s_mov_b32 s14, {32*112*1024}
    s_mov_b32 s15, 0x00020000
    s_mov_b32 s18, 131072
    s_mov_b32 s19, 0x00020000
    s_lshl_b32 s23, s20, 17
    s_add_u32 s23, s23, {H_OFF}
    s_lshr_b32 s24, s22, 1
    s_and_b32 s25, s22, 1
    s_mul_i32 s33, s22, 3584
    s_mul_i32 s30, s24, {112*1024}
    s_mul_i32 s26, s25, 3584
    s_add_u32 s30, s30, s26
    s_mul_i32 s26, s21, 7168
    s_add_u32 s30, s30, s26
    s_lshl_b32 s31, s22, 11
    s_add_u32 s34, s31, 14336
    s_mov_b32 s32, 0
    s_cmp_lt_u32 s3, 4
    s_waitcnt lgkmcnt(0)
    s_cbranch_scc1 k3_heavy0
    s_add_u32 s12, s8, {WP_OFF}
    s_addc_u32 s13, s9, 0
    s_add_u32 s16, s8, s23
    s_addc_u32 s17, s9, 0
    """)
    dm = dma_ops()
    for c in range(NS - 1):
        for i, d in enumerate(dm):
            if c == NS - 2 and i >= 3: break
            k(d)
    k(f"""
    s_branch k3_common
    k3_heavy0:
    v_lshlrev_b32 v2, 2, v0
    s_lshl_b32 s26, s3, 8
    s_mul_i32 s27, s21, 896
    s_add_u32 s27, s27, s26
    s_add_u32 s27, s27, {CSP_OFF}
    """)
    for i in range(8):
        k(f"buffer_load_dword v{8+i}, v2, s[8:11], s27 offen\ns_add_u32 s27, s27, {112*128}")
    k(f"""
    s_add_u32 s26, s26, {CS}
    v_add_u32 v2, s26, v2
    s_waitcnt vmcnt(0)
    v_pk_add_f32 v[8:9], v[8:9], v[10:11]
    v_pk_add_f32 v[12:13], v[12:13], v[14:15]
    v_pk_add_f32 v[8:9], v[8:9], v[12:13]
    v_add_f32 v8, v8, v9
    ds_write_b32 v2, v8
    k3_common:
    v_mov_b32 v4, v1
    v_lshrrev_b32 v5, 5, v0
    v_lshlrev_b32 v5, 11, v5
    v_bfe_u32 v6, v0, 2, 2
    v_lshl_add_u32 v5, v6, 8, v5
    v_xor_b32 v6, s22, v6
    v_lshl_add_u32 v5, v6, 6, v5
    v_bfe_u32 v6, v0, 4, 1
    v_lshl_add_u32 v5, v6, 5, v5
    v_and_b32 v6, 3, v0
    v_lshl_add_u32 v5, v6, 3, v5
    v_mov_b32 v2, v4
    v_mov_b32 v3, v5
    s_mov_b32 s37, 0
    s_mov_b32 s35, 0x3f803f80
    v_mov_b32 v6, 0
    v_mov_b32 v7, 0
    """)
    for i in range(32): k(f"v_mov_b64 v[{64+2*i}:{65+2*i}], 0")
    k(f"""
    s_lshl_b32 s38, s20, 1
    s_add_u32 s38, s38, s24
    s_mul_i32 s38, s38, 112
    s_mul_i32 s26, s21, 7
    s_add_u32 s38, s38, s26
    s_lshl_b32 s38, s38, 11
    s_lshl_b32 s26, s25, 9
    s_add_u32 s38, s38, s26
    s_add_u32 s38, s38, {HG_OFF}
    s_cmp_lt_u32 s3, 4
    s_cbranch_scc1 k3_heavy
    s_add_u32 s38, s38, {4*2048}
    s_waitcnt vmcnt({6*(NS-2)-3})
    """)
    stamp(k, 0)
    k("s_barrier")
    body(k, 3, 4, True)
    stamp(k, 1)
    k(f"""
    s_waitcnt lgkmcnt(0)
    v_mov_b32 v8, v6
    v_mov_b32 v9, v7
    v_permlane32_swap_b32 v6, v8
    v_permlane32_swap_b32 v7, v9
    v_add_f32 v6, v6, v8
    v_add_f32 v7, v7, v9
    v_mul_f32 v6, {f2h(1/512)}, v6
    v_mul_f32 v7, {f2h(1/512)}, v7
    v_fma_f32 v7, -v6, v6, v7
    v_max_f32 v7, 0, v7
    v_cvt_pk_bf16_f32 v6, -v6, v7
    v_and_b32 v7, 0xffff0000, v6
    v_lshlrev_b32 v6, 16, v6
    v_add_f32 v7, {f2h(1e-5)}, v7
    v_cvt_pk_bf16_f32 v7, v7, v7
    v_lshlrev_b32 v7, 16, v7
    v_sqrt_f32 v7, v7
    v_lshlrev_b32 v8, 3, v0
    v_cvt_pk_bf16_f32 v7, v7, v7
    v_lshlrev_b32 v7, 16, v7
    s_lshl_b32 s26, s22, 8
    s_add_u32 s26, s26, {ST}
    v_and_b32 v8, 0xff, v8
    v_add_u32 v8, s26, v8
    ds_write_b64 v8, v[6:7]
    s_waitcnt lgkmcnt(0)
    s_barrier
    """)
    def epi_addr():
        k(f"""
        v_lshrrev_b32 v2, 5, v0
        v_and_b32 v1, 31, v0
        v_lshlrev_b32 v1, 4, v1
        v_lshl_add_u32 v1, v2, 10, v1
        v_lshlrev_b32 v2, 4, v2
        v_add_u32 v2, {CS}, v2
        """)
    epi_addr()
    epilogue(k, 3, 4)
    stamp_end(k, 2, 2, ws="s[8:9]")
    k("""
    s_endpgm
    k3_heavy:
    s_waitcnt lgkmcnt(0)
    """)
    stamp(k, 0)
    k("s_barrier")
    body(k, 4, 0, False)
    stamp(k, 1)
    epi_addr()
    k(f"""
    v_lshlrev_b32 v8, 3, v0
    s_lshl_b32 s26, s22, 8
    s_add_u32 s26, s26, {ST}
    v_and_b32 v8, 0xff, v8
    v_add_u32 v8, s26, v8
    s_waitcnt lgkmcnt(0)
    s_barrier
    ds_read_b64 v[6:7], v8
    s_waitcnt lgkmcnt(0)
    """)
    epilogue(k, 4, 0)
    stamp_end(k, 2, 2, ws="s[8:9]")
    k("""
    k3_end:
    s_endpgm
    """)
    return k
```

```python
from common import *
OPT = {}
CH = 32768
NSL = 4
HT = NSL * CH
LDS4 = HT + 8192
PSTR = 8208
def slot(c): return ((c + 1) % NSL) * CH

def gen_k4():
    k = Kern("k4_kernel", 256, 512, lds=LDS4, vgpr=96, agpr=112, sgpr=100)
    k("""
    s_cmp_ge_u32 s2, 256
    s_cbranch_scc1 k4_end
    s_load_dwordx2 s[8:9], s[0:1], 104
    s_load_dwordx2 s[12:13], s[0:1], 88
    """)
    spin(k, "k4", "s[8:9]")
    stamp0(k)
    k(f"""
    v_lshrrev_b32 v1, 6, v0
    v_and_b32 v0, 63, v0
    v_readfirstlane_b32 s3, v1
    s_mov_b32 s10, 0x10000000
    s_mov_b32 s11, 0x00020000
    s_mov_b32 s14, {2048*1024}
    s_mov_b32 s15, 0x00020000
    s_bfe_u32 s20, s2, 0x20001
    s_lshl_b32 s20, s20, 3
    s_bfe_u32 s21, s2, 0x30003
    s_add_u32 s20, s20, s21           ; t64
    s_and_b32 s21, s2, 1
    s_lshl_b32 s21, s21, 2
    s_lshr_b32 s22, s2, 6
    s_add_u32 s21, s21, s22           ; d64
    s_and_b32 s22, s3, 1              ; dh
    s_lshr_b32 s23, s3, 1             ; kq
    v_lshlrev_b32 v1, 4, v0
    s_mul_i32 s30, s20, 112
    s_mul_i32 s24, s23, 28
    s_add_u32 s30, s30, s24
    s_lshl_b32 s30, s30, 11
    s_lshl_b32 s25, s22, 12
    s_add_u32 s30, s30, s25
    s_add_u32 s30, s30, {HG_OFF}
    s_lshl_b32 s31, s3, 12
    s_lshl_b32 s32, s21, 1
    s_add_u32 s32, s32, s22
    s_mul_i32 s32, s32, 112
    s_add_u32 s32, s32, s24
    s_lshl_b32 s32, s32, 10
    s_add_u32 s32, s32, {WD_OFF}
    v_lshrrev_b32 v2, 3, v0
    v_bfe_u32 v3, v0, 4, 1
    s_and_b32 s25, s20, 1
    v_xor_b32 v3, s25, v3
    v_lshlrev_b32 v3, 7, v3
    v_lshl_add_u32 v2, v2, 8, v3
    v_and_b32 v3, 7, v0
    v_lshl_add_u32 v2, v3, 4, v2
    s_lshr_b32 s33, s20, 1
    s_lshl_b32 s33, s33, 17
    s_lshl_b32 s25, s21, 14
    s_add_u32 s33, s33, s25
    s_lshl_b32 s25, s3, 11
    s_add_u32 s33, s33, s25
    s_add_u32 s33, s33, {H_OFF}
    s_lshl_b32 s25, s3, 10
    s_waitcnt lgkmcnt(0)
    """)
    order = []
    def dma(c):
        k(f"s_add_u32 m0, s31, {slot(c)}")
        for i in range(4):
            k(f"buffer_load_dwordx4 v1, s[8:11], s30 offen offset:{1024*i} lds"); order.append(("c", c))
        k("s_add_u32 s30, s30, 8192")
    def wd(g):
        for i in range(4):
            s = 4 * g + i
            k(f"buffer_load_dwordx4 a[{4*s}:{4*s+3}], v1, s[8:11], s32 offen offset:{1024*i}"); order.append(("w", g))
        k("s_add_u32 s32, s32, 4096")
    D = OPT.get("D", 2)
    for c in range(D):
        dma(c); wd(c)
        if c == 0:
            k(f"s_add_u32 m0, s25, {HT}\nbuffer_load_dwordx4 v2, s[8:11], s33 offen lds"); order.append(("c", 0))
    def vwait(tags):
        p = max(i for i, t in enumerate(order) if t in tags)
        k(f"s_waitcnt vmcnt({len(order)-1-p})")
    k(f"""
    v_lshrrev_b32 v4, 5, v0
    v_and_b32 v5, 31, v0
    v_lshlrev_b32 v2, 4, v5
    v_lshl_add_u32 v2, v4, 10, v2
    s_lshl_b32 s24, s23, 13
    v_add_u32 v2, s24, v2
    v_add_u32 v3, 65536, v2
    s_and_b32 s24, s23, 1
    s_lshl_b32 s24, s24, 4
    v_lshlrev_b32 v6, 3, v4
    v_add_u32 v6, s24, v6
    v_sub_u32 v6, v5, v6              ; i
    v_mov_b32 v7, 0x3f80
    v_mov_b32 v12, 0x3f800000
    """)
    for j in range(4):
        k(f"""
        v_cmp_eq_u32 vcc, {2*j}, v6
        v_cmp_eq_u32 s[26:27], {2*j+1}, v6
        v_cndmask_b32 v{8+j}, 0, v7, vcc
        v_cndmask_b32 v{8+j}, v{8+j}, v12, s[26:27]
        """)
    k(f"""
    v_bfe_u32 v6, v0, 2, 2
    v_lshl_add_u32 v7, v4, 3, v6
    v_lshlrev_b32 v7, 7, v7
    v_and_b32 v6, 1, v6
    s_lshr_b32 s25, s23, 1
    v_xor_b32 v6, s25, v6
    v_lshl_add_u32 v7, v6, 6, v7
    v_bfe_u32 v6, v0, 4, 1
    v_xor_b32 v6, v6, v4
    v_lshl_add_u32 v7, v6, 5, v7
    v_and_b32 v6, 3, v0
    v_lshl_add_u32 v7, v6, 3, v7
    s_lshl_b32 s24, s24, 7
    s_lshl_b32 s26, s22, 12
    s_add_u32 s24, s24, s26
    s_add_u32 s24, s24, {HT}
    v_add_u32 v6, s24, v7
    """)
    for i in range(16): k(f"v_mov_b64 v[{64+2*i}:{65+2*i}], 0")
    k(f"""
    v_lshrrev_b32 v12, 4, v0
    s_lshl_b32 s24, s3, 2
    v_add_u32 v12, s24, v12           ; idx
    v_bfe_u32 v13, v0, 3, 1           ; h
    v_bfe_u32 v14, v0, 2, 1           ; dh'
    v_and_b32 v15, 3, v0
    v_lshlrev_b32 v4, 8, v12
    v_lshl_add_u32 v4, v13, 7, v4
    v_lshl_add_u32 v4, v15, 5, v4
    v_mul_u32_u24 v14, {PSTR}, v14
    v_add_u32 v4, v4, v14
    ; t = 64*t64 + 32z + 16h + 4r + j ; idx = 16z + 4j + r
    v_lshrrev_b32 v14, 4, v12
    v_lshlrev_b32 v5, 5, v14
    v_lshl_add_u32 v5, v13, 4, v5
    v_and_b32 v14, 3, v12
    v_lshl_add_u32 v5, v14, 2, v5
    v_bfe_u32 v14, v12, 2, 2
    v_add_u32 v5, v5, v14
    v_lshlrev_b32 v5, 10, v5
    v_and_b32 v14, 7, v0
    v_lshl_add_u32 v5, v14, 4, v5
    s_lshl_b32 s34, s20, 16
    s_lshl_b32 s24, s21, 7
    s_add_u32 s34, s34, s24
    s_mul_i32 s35, s3, {PSTR}
    """)
    def rd(c, s, z):
        r = 16 + 8 * s + 4 * z
        off = slot(c) + s * 2048 + z * 512
        base = "v2"
        if off >= 65536: base = "v3"; off -= 65536
        return f"ds_read_b128 v[{r}:{r+3}], {base} offset:{off}"
    for c in range(7):
        vwait([("c", c)])
        if c == 0: stamp(k, 0)
        k("s_barrier")
        if c == 0:
            k("ds_read_b64_tr_b16 v[12:13], v6\nds_read_b64_tr_b16 v[14:15], v6 offset:512")
        for s in range(4):
            for z in range(2): k(rd(c, s, z))
        if c + D < 7: dma(c + D); wd(c + D)
        vwait([("w", c)])
        if c == 0:
            k(f"""
            s_waitcnt lgkmcnt(8)
            s_cmp_ge_u32 s23, 2
            s_cbranch_scc1 k4_z1
            v_mfma_f32_32x32x16_bf16 v[64:79], v[12:15], v[8:11], v[64:79]
            s_branch k4_z2
            k4_z1:
            v_mfma_f32_32x32x16_bf16 v[80:95], v[12:15], v[8:11], v[80:95]
            k4_z2:
            """)
        for s in range(4):
            for z in range(2):
                k(f"s_waitcnt lgkmcnt({7 - 2*s - z})")
                r = 16 + 8 * s + 4 * z; a = 64 + 16 * z; w = 4 * (4 * c + s)
                k(f"v_mfma_f32_32x32x16_bf16 v[{a}:{a+15}], v[{r}:{r+3}], a[{w}:{w+3}], v[{a}:{a+15}]")
    stamp(k, 1)
    k("s_mov_b32 m0, s35")
    for i in range(32): k(f"ds_write_addtid_b32 v{64+i} offset:{256*i}")
    k("s_waitcnt lgkmcnt(0)\ns_barrier")
    for q in range(4):
        k(f"ds_read_b128 v[{16+8*q}:{19+8*q}], v4 offset:{2*q*PSTR}")
        k(f"ds_read_b128 v[{20+8*q}:{23+8*q}], v4 offset:{2*q*PSTR+16}")
    k("s_waitcnt lgkmcnt(4)")
    for j in range(4): k(f"v_pk_add_f32 v[{16+2*j}:{17+2*j}], v[{16+2*j}:{17+2*j}], v[{24+2*j}:{25+2*j}]")
    k("s_waitcnt lgkmcnt(0)")
    for j in range(4): k(f"v_pk_add_f32 v[{32+2*j}:{33+2*j}], v[{32+2*j}:{33+2*j}], v[{40+2*j}:{41+2*j}]")
    for j in range(4): k(f"v_pk_add_f32 v[{16+2*j}:{17+2*j}], v[{16+2*j}:{17+2*j}], v[{32+2*j}:{33+2*j}]")
    for j in range(4): k(f"v_cvt_pk_bf16_f32 v{8+j}, v{16+2*j}, v{17+2*j}")
    k("buffer_store_dwordx4 v[8:11], v5, s[12:15], s34 offen")
    spin(k, "end", "s[8:9]")
    stamp_end(k, 3, 2, ws="s[8:9]")
    k("""
    k4_end:
    s_endpgm
    """)
    return k
```

```python
import sys
import common
args = sys.argv[1:]
common.DBG = "dbg" in args
common.RT = "rt" in args
for a in args:
    if a.startswith("spin="): common.SPIN = a[5:]
import importlib
from asmlib import *
ks = []
n = 4
for a in args:
    if a.startswith("n="): n = int(a[2:])
import k1, k2, k3, k4
for a in args:
    if a.startswith("o") and a[2] == ":":
        kk, vv = a[3:].split("=")
        {"1": k1, "2": k2, "3": k3, "4": k4}[a[1]].OPT[kk] = eval(vv)
from k1 import gen_k1
ks.append(gen_k1())
if n >= 2:
    from k2 import gen_k2
    ks.append(gen_k2())
if n >= 3:
    from k3 import gen_k3
    ks.append(gen_k3())
if n >= 4:
    from k4 import gen_k4
    ks.append(gen_k4())
L = list(ks)
for a in args:
    if a.startswith("empty="):
        e = Kern("e_kernel", 256, 64, lds=0, vgpr=8, sgpr=16)
        e("s_endpgm")
        ks.append(e); L += [e] * int(a[6:])
for a in args:
    if a.startswith("front="):
        e = Kern("e_kernel", 256, 64, lds=0, vgpr=8, sgpr=16)
        e("s_endpgm")
        ks.append(e); L = [e] * int(a[6:]) + L
    if a.startswith("rep="):
        i = int(a[4:]); L = L[:i] + [L[i-1]] + L[i:]
out = [a for a in args if a.endswith(".s")][0]
open(out, "w").write(build_file(ks, L))
```

```python
from common import *
OPT = {}
UXL = 2048
KL = UXL + 16384
KSTR = 4160
SP = KL + 2 * KSTR
SPSTR = 2080
WST = SP + 2 * SPSTR + 64
WMOFF = 8192 + 64
WST2 = WST + 2 * WMOFF
LDS2 = WST2 + 8192

class Sched:
    def __init__(self, k):
        self.k = k; self.n = 0; self.pos = {}; self.done = -1
    def ds(self, txt, tag=None):
        self.k(txt);
        if tag is not None: self.pos[tag] = self.n
        self.n += 1
    def wait(self, *tags):
        p = max(self.pos[t] for t in tags)
        if p <= self.done: return
        c = self.n - 1 - p
        assert c <= 15, c
        self.k(f"s_waitcnt lgkmcnt({c})"); self.done = p

def conv_body(k, tiles, look=10):
    ACC = lambda ti: 64 + 16 * ti
    S = Sched(k)
    mf = []
    for p in range(-3, 4 * max(tiles) + 1):
        for ti, c in enumerate(tiles):
            n = 4 * c - p
            if 0 <= n <= 31: mf.append((p, ti, n))
    loads = []; seen = set()
    for idx, (p, ti, n) in enumerate(mf):
        if ("B", p) not in seen: seen.add(("B", p)); loads.append((idx, ("B", p)))
        if ("A", n) not in seen:
            seen.add(("A", n)); loads.append((idx, ("A0", n))); loads.append((idx, ("A1", n)))
    lastuse = {}
    for idx, (p, ti, n) in enumerate(mf): lastuse[p] = idx
    NB = 4
    def issue(l):
        kind, x = l
        if kind == "B":
            r = 16 + 4 * ((x + 3) % NB)
            S.ds(f"ds_read_b128 v[{r}:{r+3}], v{2 + (x & 1)} offset:{512*(x+3)}", l)
        else:
            hf = int(kind[1])
            S.ds(f"ds_read_b64_tr_b16 a[{4*x+2*hf}:{4*x+2*hf+1}], v4 offset:{128*x + 32*(1-hf)}", l)
    li = 0
    fill = []
    for idx, (p, ti, n) in enumerate(mf):
        need_pos = max(j for j, (i2, _) in enumerate(loads) if i2 <= idx)
        cnt = 0
        while li < len(loads) and (li <= need_pos or (li <= need_pos + look and (idx == 0 or cnt < 3))):
            i2, l = loads[li]
            if l[0] == "B" and l[1] - NB >= -3 and lastuse[l[1] - NB] >= idx: break
            if S.n - 1 - max(S.pos.get(("B", p), S.n), S.pos.get(("A1", n), S.n)) >= 14: break
            issue(l); li += 1; cnt += 1
        assert li > need_pos
        S.wait(("B", p), ("A1", n))
        r = 16 + 4 * ((p + 3) % NB)
        a = ACC(ti)
        cc = "0" if p == -3 else f"v[{a}:{a+15}]"
        k(f"v_mfma_f32_32x32x16_bf16 v[{a}:{a+15}], a[{4*n}:{4*n+3}], v[{r}:{r+3}], {cc}")
        if n == 0:
            c = tiles[ti]
            ep = [f"v_mov_b32 v{32+ti}, 0"]
            for m in range(1, 4):
                for j in range(4):
                    ep.append(f"v_add_f32_dpp v{a+4*j}, v{a+4*j+m}, v{a+4*j} row_ror:{4*m} row_mask:0xf bank_mask:0x{(0xf<<m)&0xf:x}")
                for j in range(4):
                    d = a + 4 * (j + 1) if j < 3 else 32 + ti
                    ep.append(f"v_add_f32_dpp v{d}, v{a+4*j+m}, v{d} row_ror:{4*m} row_mask:0xf bank_mask:0x{(1<<m)-1:x}")
            for e in ep: fill.append((idx + 3, e, False))
            fill.append((idx + 3, f"ds_write_b32 v5, v{32+ti} offset:{256*c+16}", True))
            fill.append((idx + 3, f"ds_read_b64 v[{36+2*ti}:{37+2*ti}], v6 offset:{2048*c}", True))
        cnt = 0
        while fill and fill[0][0] <= idx and cnt < 5:
            _, t, isds = fill.pop(0)
            if isds: S.ds(t)
            else: k(t)
            cnt += 1
    for _, t, isds in fill:
        if isds: S.ds(t)
        else: k(t)
    k("s_waitcnt lgkmcnt(0)")
    stamp(k, 1)
    k("s_barrier")
    for ti, c in enumerate(tiles):
        k(f"ds_read_b32 v{32+ti}, v5 offset:{256*c}")
    for ti, c in enumerate(tiles):
        x = 36 + 2 * ti; t = 44 + 4 * ti; a = ACC(ti)
        k(f"""
        v_lshlrev_b32 v{t}, 16, v{x}
        v_and_b32 v{t+1}, s24, v{x}
        v_lshlrev_b32 v{t+2}, 16, v{x+1}
        v_and_b32 v{t+3}, s24, v{x+1}
        v_add_f32 v{t}, v{t}, v{a}
        v_add_f32 v{t+1}, v{t+1}, v{a+4}
        v_add_f32 v{t+2}, v{t+2}, v{a+8}
        v_add_f32 v{t+3}, v{t+3}, v{a+12}
        v_cvt_pk_bf16_f32 v{x+1}, v{t+2}, v{t+3}
        """)
    for ti, c in enumerate(tiles):
        x = 36 + 2 * ti; t = 44 + 4 * ti
        k(f"""
        s_waitcnt lgkmcnt({3-ti})
        v_add_f32 v{t}, v{t}, v{32+ti}
        v_cvt_pk_bf16_f32 v{x}, v{t}, v{t+1}
        s_mov_b32 s25, {H_OFF + 2*c*131072}
        buffer_store_dwordx2 v[{x}:{x+1}], v7, s[8:11], s25 offen sc1
        """)

def gen_k2():
    k = Kern("k2_kernel", 256, 384, lds=LDS2, vgpr=128, agpr=128, sgpr=100)
    k("""
    s_cmp_ge_u32 s2, 256
    s_cbranch_scc1 k2_end
    s_load_dwordx2 s[8:9], s[0:1], 104
    s_load_dwordx4 s[12:15], s[0:1], 64
    s_load_dwordx2 s[16:17], s[0:1], 80
    """)
    spin(k, "k2", "s[8:9]")
    stamp0(k)
    k(f"""
    v_lshrrev_b32 v1, 6, v0
    v_and_b32 v0, 63, v0
    v_readfirstlane_b32 s3, v1
    s_mov_b32 s10, 0x10000000
    s_mov_b32 s11, 0x00020000
    s_cmp_ge_u32 s3, 4
    s_cbranch_scc1 k2_repack
    ; dp
    s_and_b32 s20, s2, 0xf0
    s_and_b32 s21, s2, 7
    s_lshl_b32 s21, s21, 1
    s_bfe_u32 s22, s2, 0x10003
    s_add_u32 s20, s20, s21
    s_add_u32 s20, s20, s22           ; dp
    s_lshr_b32 s21, s3, 1             ; ch
    s_and_b32 s22, s3, 1              ; par
    v_lshrrev_b32 v1, 2, v0
    v_lshlrev_b32 v1, 14, v1
    v_lshrrev_b32 v2, 4, v0
    v_xor_b32 v2, v2, v0
    v_and_b32 v2, 3, v2
    v_lshlrev_b32 v2, 4, v2
    s_lshl_b32 s23, s20, 6
    v_add3_u32 v1, v1, v2, s23
    v_lshlrev_b32 v2, 4, v0           ; lane*16
    s_lshl_b32 s23, s20, 1
    s_add_u32 s23, s23, s21           ; d
    s_lshl_b32 s26, s23, 12
    s_lshl_b32 s27, s22, 11
    s_add_u32 s26, s26, s27
    s_add_u32 s26, s26, {KW_OFF}
    s_mul_i32 s28, s21, {KSTR}
    s_add_u32 s28, s28, {KL}          ; KL(ch)
    s_add_u32 s27, s27, s28
    s_add_u32 m0, s27, 64
    s_lshl_b32 s29, s3, 18            ; n = wave + 4*j
    s_lshl_b32 s30, s3, 10
    s_add_u32 s30, s30, {UXL}
    s_waitcnt lgkmcnt(0)
    buffer_load_dwordx4 v2, s[8:11], s26 offen lds
    buffer_load_dwordx4 v2, s[8:11], s26 offen offset:1024 lds
    """)
    for j in range(4):
        k(f"s_mov_b32 m0, s30\ns_add_u32 s30, s30, 4096\nbuffer_load_dwordx4 v1, s[8:11], s29 offen lds\ns_add_u32 s29, s29, {4*262144}")
    k(f"""
    v_mov_b32 v8, 0
    v_mov_b32 v9, 0
    v_lshlrev_b32 v10, 3, v0
    s_lshl_b32 s29, s3, 9
    v_add_u32 v10, s29, v10
    ds_write_b64 v10, v[8:9]
    v_and_b32 v10, 7, v0
    v_lshlrev_b32 v10, 3, v10
    v_add_u32 v10, s28, v10
    ds_write_b64 v10, v[8:9]
    s_mul_i32 s29, s21, {SPSTR}
    s_add_u32 s29, s29, {SP}
    v_and_b32 v10, 1, v0
    v_lshlrev_b32 v10, 3, v10
    v_add_u32 v10, s29, v10
    ds_write_b64 v10, v[8:9]
    v_lshrrev_b32 v8, 5, v0
    v_bfe_u32 v9, v0, 2, 2
    v_bfe_u32 v10, v0, 4, 1
    v_and_b32 v11, 3, v0
    v_lshl_add_u32 v10, v10, 2, v11   ; a_l
    v_sub_u32 v12, v10, v8            ; a_l-hh
    v_lshlrev_b32 v13, 8, v12
    v_lshl_add_u32 v13, v9, 6, v13
    v_add_u32 v13, {UXL - 1536}, v13
    v_and_b32 v14, 3, v12
    v_xor_b32 v14, s21, v14
    v_lshl_add_u32 v2, v14, 4, v13
    v_xor_b32 v14, 2, v14
    v_lshl_add_u32 v3, v14, 4, v13
    v_and_b32 v12, 1, v0
    v_lshlrev_b32 v12, 5, v12
    v_bfe_u32 v13, v0, 4, 1
    v_lshl_add_u32 v12, v13, 4, v12
    v_bfe_u32 v13, v0, 1, 1
    v_lshl_add_u32 v12, v13, 3, v12
    v_lshl_add_u32 v12, v8, 6, v12
    v_lshlrev_b32 v13, 3, v9
    v_sub_u32 v12, v12, v13
    s_add_u32 s28, s28, 32
    v_add_u32 v4, s28, v12
    v_lshl_add_u32 v12, v10, 1, v8
    v_lshlrev_b32 v12, 4, v12
    v_lshl_add_u32 v12, v9, 2, v12
    v_add_u32 v5, s29, v12
    s_add_u32 s29, s21, 2
    v_xor_b32 v12, s29, v11
    v_lshlrev_b32 v12, 4, v12
    v_lshl_add_u32 v12, v10, 8, v12
    v_lshl_add_u32 v12, v9, 6, v12
    v_lshl_add_u32 v12, v8, 3, v12
    v_add_u32 v6, {UXL}, v12
    s_and_b32 s29, s23, 3
    v_xor_b32 v12, s29, v11
    v_lshlrev_b32 v12, 6, v12
    s_bfe_u32 s29, s23, 0x10003
    s_lshl_b32 s29, s29, 1
    v_xor_b32 v13, s29, v9
    v_lshl_add_u32 v12, v13, 4, v12
    v_lshl_add_u32 v12, v8, 3, v12
    v_bfe_u32 v13, v0, 4, 1
    v_lshl_add_u32 v12, v13, 17, v12
    s_lshl_b32 s29, s23, 8
    v_add_u32 v7, s29, v12
    s_mov_b32 s24, 0xffff0000
    s_waitcnt vmcnt(0) lgkmcnt(0)
    """)
    stamp(k, 0)
    k("""
    s_barrier
    s_cmp_eq_u32 s22, 1
    s_cbranch_scc1 k2_par1
    """)
    conv_body(k, [0, 3, 4, 7])
    stamp_end(k, 1, 2, ws="s[8:9]")
    k("s_endpgm\nk2_par1:")
    conv_body(k, [1, 2, 5, 6])
    stamp_end(k, 1, 2, ws="s[8:9]")
    k("s_endpgm")
    k(f"""
    k2_repack:
    s_cmp_ge_u32 s2, 224
    s_cbranch_scc1 k2_end
    s_and_b32 s20, s2, 7              ; kr
    s_lshr_b32 s21, s2, 3             ; fb
    s_cmp_eq_u32 s3, 5
    s_cbranch_scc1 k2_repack2
    v_lshrrev_b32 v1, 3, v0
    v_mul_u32_u24 v1, 3584, v1
    v_and_b32 v2, 7, v0
    v_lshl_add_u32 v1, v2, 4, v1
    s_mul_i32 s22, s20, {64*3584}
    s_lshl_b32 s23, s21, 7
    s_add_u32 s22, s22, s23
    s_mov_b32 s18, {512*3584}
    s_mov_b32 s19, 0x00020000
    s_mov_b32 s30, {512*3584}
    s_mov_b32 s31, 0x00020000
    s_mov_b32 s23, {WST}
    s_waitcnt lgkmcnt(0)
    s_mov_b32 s16, s12
    s_mov_b32 s17, s13
    s_mov_b32 s28, s14
    s_mov_b32 s29, s15
    """)
    for j in range(8):
        k(f"""
        s_mov_b32 m0, {WST + 1024*j}
        buffer_load_dwordx4 v1, s[16:19], s22 offen lds
        s_mov_b32 m0, {WST + WMOFF + 1024*j}
        buffer_load_dwordx4 v1, s[28:31], s22 offen lds
        s_add_u32 s22, s22, {8*3584}
        """)
    k(f"""
    v_lshrrev_b32 v2, 4, v0
    v_lshlrev_b32 v2, 10, v2
    v_bfe_u32 v3, v0, 2, 2
    v_lshl_add_u32 v2, v3, 7, v2
    v_and_b32 v3, 3, v0
    v_lshl_add_u32 v2, v3, 3, v2
    v_add_u32 v2, {WST}, v2
    v_cmp_gt_u32 s[26:27], 2, v3
    v_lshlrev_b32 v3, 4, v0
    s_mul_i32 s22, s20, {2*224*1024}
    s_lshl_b32 s23, s21, 13
    s_add_u32 s22, s22, s23
    s_add_u32 s22, s22, {WP_OFF}
    s_add_u32 s23, s22, 4096
    v_lshlrev_b32 v4, 2, v0
    s_mul_i32 s24, s20, {224*64}
    s_lshl_b32 s25, s21, 9
    s_add_u32 s24, s24, s25
    s_add_u32 s24, s24, {CSP_OFF}
    s_mov_b32 s25, 0x3f803f80
    v_mov_b64 v[8:9], 0
    v_mov_b64 v[10:11], 0
    v_mov_b64 v[12:13], 0
    v_mov_b64 v[14:15], 0
    s_barrier
    """)
    nst = 0
    for c2 in range(2):
        k(f"s_waitcnt vmcnt({8 - 8*c2 + nst})")
        if c2 == 0: stamp(k, 0)
        G = lambda f: 16 + 8 * f
        U = lambda f: 20 + 8 * f
        T = lambda f, h: 48 + 32 * c2 + 8 * f + 4 * h
        for f in range(4):
            for m, R in enumerate((G, U)):
                for hf in range(2):
                    r = R(f) + 2 * hf
                    k(f"ds_read_b64_tr_b16 v[{r}:{r+1}], v2 offset:{m*WMOFF + c2*4096 + hf*512 + f*32}")
        k("s_mov_b64 vcc, s[26:27]")
        for f in range(4):
            k(f"s_waitcnt lgkmcnt({12-4*f})")
            for q in range(4):
                k(f"v_cndmask_b32_dpp v{T(f,0)+q}, v{U(f)+q}, v{G(f)+q}, vcc quad_perm:[0,1,0,1] row_mask:0xf bank_mask:0xf")
            k(f"buffer_store_dwordx4 v[{T(f,0)}:{T(f,0)+3}], v3, s[8:11], s{22 + f//2} offen offset:{2048*(f&1)} sc1"); nst += 1
        k("s_not_b64 vcc, s[26:27]")
        for f in range(4):
            for q in range(4):
                k(f"v_cndmask_b32_dpp v{T(f,1)+q}, v{G(f)+q}, v{U(f)+q}, vcc quad_perm:[2,3,2,3] row_mask:0xf bank_mask:0xf")
            k(f"buffer_store_dwordx4 v[{T(f,1)}:{T(f,1)+3}], v3, s[8:11], s{22 + f//2} offen offset:{2048*(f&1)+1024} sc1"); nst += 1
        for q in range(4):
            for f in range(4):
                for h in range(2):
                    k(f"v_dot2c_f32_bf16 v{8+2*f+h}, s25, v{T(f,h)+q}")
        k(f"s_add_u32 s22, s22, {224*1024}\ns_add_u32 s23, s23, {224*1024}")
    for b in (8, 12): k(f"v_permlane16_swap_b32 v{b}, v{b+1}\nv_permlane16_swap_b32 v{b+2}, v{b+3}")
    for b in (8, 12): k(f"v_add_f32 v{b}, v{b}, v{b+1}\nv_add_f32 v{b+2}, v{b+2}, v{b+3}")
    for b in (8, 12): k(f"v_permlane32_swap_b32 v{b}, v{b+2}")
    for b in (8, 12): k(f"v_add_f32 v{b}, v{b}, v{b+2}")
    k("""
    buffer_store_dword v8, v4, s[8:11], s24 offen sc1
    buffer_store_dword v12, v4, s[8:11], s24 offen offset:256 sc1
    """)
    stamp_end(k, 1, 1, ws="s[8:9]")
    k(f"""
    s_endpgm
    k2_repack2:
    v_lshrrev_b32 v1, 3, v0
    v_lshlrev_b32 v1, 10, v1
    v_and_b32 v2, 7, v0
    v_lshl_add_u32 v1, v2, 4, v1
    s_lshl_b32 s22, s21, 16
    s_lshl_b32 s23, s20, 7
    s_add_u32 s22, s22, s23
    s_mov_b32 s18, {1792*1024}
    s_mov_b32 s19, 0x00020000
    s_waitcnt lgkmcnt(0)
    """)
    for j in range(8):
        k(f"""
        s_mov_b32 m0, {WST2 + 1024*j}
        buffer_load_dwordx4 v1, s[16:19], s22 offen lds
        s_add_u32 s22, s22, 8192
        """)
    k(f"""
    v_lshrrev_b32 v2, 5, v0
    v_lshlrev_b32 v2, 8, v2
    v_bfe_u32 v3, v0, 2, 1
    v_lshl_add_u32 v2, v3, 7, v2
    v_bfe_u32 v3, v0, 3, 1
    v_lshl_add_u32 v2, v3, 9, v2
    v_bfe_u32 v3, v0, 4, 1
    v_lshl_add_u32 v2, v3, 5, v2
    v_and_b32 v3, 3, v0
    v_lshl_add_u32 v2, v3, 3, v2
    v_add_u32 v2, {WST2}, v2
    v_lshlrev_b32 v3, 4, v0
    s_mul_i32 s22, s20, {2*112*1024}
    s_lshl_b32 s23, s21, 12
    s_add_u32 s22, s22, s23
    s_add_u32 s22, s22, {WD_OFF}
    s_add_u32 s23, s22, {112*1024}
    s_barrier
    """)
    nst = 0
    for fs in range(4):
        k(f"s_waitcnt vmcnt({6 - 2*fs + nst})")
        if fs == 0: stamp(k, 0)
        for dl in range(2):
            for hf in range(2):
                r = 16 + 8 * fs + 4 * dl + 2 * hf
                k(f"ds_read_b64_tr_b16 v[{r}:{r+1}], v2 offset:{fs*2048 + hf*1024 + dl*64}")
        for dl in range(2):
            r = 16 + 8 * fs + 4 * dl
            k(f"s_waitcnt lgkmcnt({2-2*dl})")
            k(f"buffer_store_dwordx4 v[{r}:{r+3}], v3, s[8:11], s{22+dl} offen offset:{1024*fs} sc1"); nst += 1
    stamp_end(k, 1, 1, ws="s[8:9]")
    k("""
    k2_end:
    s_endpgm
    """)
    return k
```

```python
from common import *
import math
NS = 4
ASL = 14336
BR = NS * ASL
CS = BR + NS * 8192
ST = CS + 1024
LDS3 = ST + 2048
OPT = dict(stats=True, dma=True, D=3, prio=0, lprio=1, map=0, seq=0, s4=0, order=0)
P_, Q_ = 8, 52
ACC = 96

def dma_ops(sl):
    return [
        f"s_add_u32 m0, s34, {sl*8192}\nbuffer_load_dwordx4 v1, s[16:19], s31 offen lds",
        "buffer_load_dwordx4 v1, s[16:19], s31 offen offset:1024 lds\ns_add_u32 s31, s31, 8192",
        f"s_add_u32 m0, s33, {sl*ASL}\nbuffer_load_dwordx4 v1, s[12:15], s30 offen lds",
        "buffer_load_dwordx4 v1, s[12:15], s30 offen offset:1024 lds",
        "buffer_load_dwordx4 v1, s[12:15], s30 offen offset:2048 lds",
        f"""s_mov_b32 exec_hi, 0
        buffer_load_dwordx4 v1, s[12:15], s30 offen offset:3072 lds
        s_mov_b32 exec_hi, -1
        s_add_u32 s30, s30, {224*1024}""",
    ]

def reads(base, sl):
    r = []
    for v in range(4):
        r.append(f"ds_read_b64_tr_b16 v[{base+4*v}:{base+4*v+1}], v{3+v} offset:{sl*8192}")
        r.append(f"ds_read_b64_tr_b16 v[{base+4*v+2}:{base+4*v+3}], v{3+v} offset:{sl*8192+1024}")
    for j in range(7):
        r.append(f"ds_read_b128 v[{base+16+4*j}:{base+19+4*j}], v2 offset:{sl*ASL + j*1024}")
    return r

def compute(k):
    for r in reads(P_, 0): k(r)
    lab = k.label("loop")
    k(f"s_mov_b32 s36, 4\n{lab}:")
    for c in range(4):
        cur, nxt = (P_, Q_) if c % 2 == 0 else (Q_, P_)
        rd = reads(nxt, (c + 1) % NS)
        k("s_waitcnt lgkmcnt(0)")
        n = 0
        for j, v in ([(j, v) for j in range(7) for v in range(4)] if OPT["order"] == 0 else [(j, v) for v in range(4) for j in range(7)]):
            if True:
                a = ACC + 16 * j + 4 * v
                k(f"v_mfma_f32_16x16x32_bf16 v[{a}:{a+3}], v[{cur+16+4*j}:{cur+19+4*j}], v[{cur+4*v}:{cur+4*v+3}], v[{a}:{a+3}]")
                if n == 0: k("s_barrier")
                if n < len(rd): k(rd[n])
                n += 1
    k(f"s_sub_u32 s36, s36, 1\ns_cmp_lg_u32 s36, 0\ns_cbranch_scc1 {lab}")

def epilogue(k):
    for j in range(7):
        a0 = ACC + 16 * j; b = 24 + 4 * j
        A = [a0 + 4 * v for v in range(4)]; S = [8 + 4 * v for v in range(4)]
        for a, s in zip(A, S):
            k(f"v_pk_fma_f32 v[{a}:{a+1}], v[{b}:{b+1}], v[{s}:{s+1}], v[{a}:{a+1}] op_sel_hi:[1,0,1]")
        for a, s in zip(A, S): k(f"v_pk_mul_f32 v[{a}:{a+1}], v[{a}:{a+1}], v[{s+2}:{s+3}] op_sel_hi:[1,0]")
        for a, s in zip(A, S):
            k(f"v_exp_f32 v{a}, v{a}\nv_exp_f32 v{a+1}, v{a+1}")
            k(f"v_pk_fma_f32 v[{a+2}:{a+3}], v[{b+2}:{b+3}], v[{s}:{s+1}], v[{a+2}:{a+3}] op_sel_hi:[1,0,1]")
        for a, s in zip(A, S): k(f"v_pk_fma_f32 v[{a}:{a+1}], v[{a}:{a+1}], v[{s}:{s+1}], v[{s}:{s+1}] op_sel:[0,1,1] op_sel_hi:[1,1,1]")
        for a in A: k(f"v_rcp_f32 v{a}, v{a}\nv_rcp_f32 v{a+1}, v{a+1}")
        for a in A: k(f"v_pk_mul_f32 v[{a+2}:{a+3}], v[{a+2}:{a+3}], v[{a}:{a+1}]")
        for v, a in enumerate(A): k(f"v_cvt_pk_bf16_f32 v{a0+v}, v{a+2}, v{a+3}")
        k(f"""
        v_permlane16_swap_b32 v{a0}, v{a0+1}
        v_permlane16_swap_b32 v{a0+2}, v{a0+3}
        v_permlane32_swap_b32 v{a0}, v{a0+2}
        v_permlane32_swap_b32 v{a0+1}, v{a0+3}
        buffer_store_dwordx4 v[{a0}:{a0+3}], v1, s[8:11], s38 offen offset:{(j&3)*1024} sc1
        """)
        if j == 3: k("s_add_u32 s38, s38, 4096")

def smf():
    r = []
    if OPT["s4"]:
        for v in range(2):
            for hf in range(2):
                b = f"v[{8+4*v+2*hf}:{9+4*v+2*hf}]"
                r.append(f"v_mfma_f32_4x4x4bf16_1k v[{20+4*v}:{23+4*v}], {b}, {b}, v[{20+4*v}:{23+4*v}]\n" +
                         f"v_mfma_f32_4x4x4bf16_1k v[{28+4*v}:{31+4*v}], v[16:17], {b}, v[{28+4*v}:{31+4*v}]")
        return [r[0], r[2], r[1], r[3]]
    for v in range(2):
        r.append(f"v_mfma_f32_16x16x32_bf16 v[{20+4*v}:{23+4*v}], v[{8+4*v}:{11+4*v}], v[{8+4*v}:{11+4*v}], v[{20+4*v}:{23+4*v}]")
        r.append(f"v_mfma_f32_16x16x32_bf16 v[{28+4*v}:{31+4*v}], v[16:19], v[{8+4*v}:{11+4*v}], v[{28+4*v}:{31+4*v}]")
    return r
def loader(k):
    D = OPT["D"]
    lab = k.label("lloop")
    k(f"s_mov_b32 s36, 4\n{lab}:")
    for c in range(4):
        dm = dma_ops((c + D) % NS) if OPT["dma"] else [""] * 6
        k(f"s_waitcnt vmcnt({6*(D-1)}) lgkmcnt(0)")
        k("s_barrier")
        mf = smf() if OPT["stats"] else [""] * 4
        rd = ""
        if OPT["stats"]:
            for v in range(2):
                rd += f"ds_read_b64_tr_b16 v[{8+4*v}:{9+4*v}], v{2+v} offset:{c*8192}\n"
                rd += f"ds_read_b64_tr_b16 v[{10+4*v}:{11+4*v}], v{2+v} offset:{c*8192+1024}\n"
        seq = {0: "d0 m0 d1 m1 d2 m2 d3 m3 r d4 d5", 1: "m0 m1 m2 m3 r d0 d1 d2 d3 d4 d5", 2: "d0 d1 m0 m1 d2 d3 m2 m3 d4 r d5",
               3: "d0 d1 d2 d3 d4 d5 m0 m1 m2 m3 r"}[OPT["seq"]]
        for x in seq.split():
            k(rd if x == "r" else (dm if x[0] == "d" else mf)[int(x[1])])
    k(f"s_sub_u32 s36, s36, 1\ns_cmp_lg_u32 s36, 0\ns_cbranch_scc1 {lab}")
    k("s_waitcnt lgkmcnt(0)")
    if OPT["stats"]:
        for m in smf(): k(m)

def gen_k3():
    D = OPT["D"]
    k = Kern("k3_kernel", 256, 512, lds=LDS3, vgpr=208, sgpr=100)
    k("""
    s_cmp_ge_u32 s2, 256
    s_cbranch_scc1 k3_end
    s_load_dwordx2 s[8:9], s[0:1], 104
    """)
    spin(k, "k3", "s[8:9]")
    stamp0(k)
    if OPT["map"] == 0:
        mp = """
        s_and_b32 s20, s2, 1
        s_lshl_b32 s20, s20, 3
        s_bfe_u32 s21, s2, 0x30003
        s_add_u32 s20, s20, s21           ; tt
        s_bfe_u32 s21, s2, 0x20001
        s_lshl_b32 s21, s21, 2
        s_lshr_b32 s22, s2, 6
        s_add_u32 s21, s21, s22           ; ft
        """
    elif OPT["map"] == 1:
        mp = """
        s_bfe_u32 s20, s2, 0x20001
        s_lshl_b32 s20, s20, 2
        s_bfe_u32 s21, s2, 0x20003
        s_add_u32 s20, s20, s21           ; tt
        s_and_b32 s21, s2, 1
        s_lshl_b32 s21, s21, 3
        s_lshr_b32 s22, s2, 5
        s_add_u32 s21, s21, s22           ; ft
        """
    else:
        mp = """
        s_and_b32 s20, s2, 7
        s_lshl_b32 s20, s20, 1
        s_bfe_u32 s21, s2, 0x10003
        s_add_u32 s20, s20, s21           ; tt
        s_lshr_b32 s21, s2, 4             ; ft
        """
    k(f"""
    v_lshrrev_b32 v1, 6, v0
    v_and_b32 v0, 63, v0
    v_readfirstlane_b32 s3, v1
    s_mov_b32 s10, 0x10000000
    s_mov_b32 s11, 0x00020000
    {mp}
    s_and_b32 s22, s3, 3
    v_lshlrev_b32 v1, 4, v0
    s_cmp_lt_u32 s3, 4
    s_cbranch_scc1 k3_comp
    s_mov_b32 s14, {16*224*1024}
    s_mov_b32 s15, 0x00020000
    s_mov_b32 s18, 131072
    s_mov_b32 s19, 0x00020000
    s_lshl_b32 s23, s20, 17
    s_add_u32 s23, s23, {H_OFF}
    s_mul_i32 s33, s22, 3584
    s_mul_i32 s30, s21, {ASL}
    s_add_u32 s30, s30, s33
    s_lshl_b32 s31, s22, 11
    s_add_u32 s34, s31, {BR}
    s_waitcnt lgkmcnt(0)
    s_add_u32 s12, s8, {WP_OFF}
    s_addc_u32 s13, s9, 0
    s_add_u32 s16, s8, s23
    s_addc_u32 s17, s9, 0
    """)
    for c in range(D):
        for d in dma_ops(c): k(d)
    if OPT["lprio"]: k(f"s_setprio {OPT['lprio']}")
    k(f"""
    v_lshrrev_b32 v4, 4, v0
    v_bfe_u32 v5, v0, 2, 2
    v_lshl_add_u32 v6, v4, 3, v5
    v_lshlrev_b32 v6, 8, v6
    v_and_b32 v7, 3, v0
    v_lshl_add_u32 v6, v7, 3, v6
    v_add_u32 v6, {BR}, v6
    v_cmp_eq_u32 s[40:41], v4, v5
    v_cmp_eq_u32 s[42:43], 1, v7
    v_cmp_eq_u32 s[44:45], 2, v7
    v_cmp_eq_u32 s[46:47], 3, v7
    v_and_b32 v7, 1, v4
    v_lshl_add_u32 v7, v5, 1, v7
    s_lshl_b32 s24, s22, 1
    v_xor_b32 v7, s24, v7
    v_lshl_add_u32 v2, v7, 5, v6
    v_xor_b32 v3, 32, v2
    v_and_b32 v6, 15, v0
    v_lshlrev_b32 v6, 4, v6
    s_lshl_b32 s24, s22, 9
    s_add_u32 s24, s24, {ST}
    v_add_u32 v6, s24, v6
    v_mov_b32 v16, 0x3f803f80
    v_mov_b32 v17, v16
    v_mov_b32 v18, v16
    v_mov_b32 v19, v16
    """)
    for i in range(8): k(f"v_mov_b64 v[{20+2*i}:{21+2*i}], 0")
    for i in range(4): k(f"v_mov_b64 v[{8+2*i}:{9+2*i}], 0")
    stamp(k, 0)
    loader(k)
    stamp(k, 1)
    k("s_barrier")
    fin = [[], []]
    for v in range(2):
        g = 20 + 4 * v; s_ = 28 + 4 * v; o = 8 + 4 * v
        fin[v] = f"""v_cndmask_b32 v{g}, v{g}, v{g+1}, s[42:43]
        v_cndmask_b32 v{g}, v{g}, v{g+2}, s[44:45]
        v_cndmask_b32 v{g}, v{g}, v{g+3}, s[46:47]
        v_mul_f32 v{o}, {f2h(1/512)}, v{s_}
        v_mul_f32 v{o+1}, {f2h(1/512)}, v{g}
        v_fma_f32 v{o+1}, -v{o}, v{o}, v{o+1}
        v_max_f32 v{o+1}, 0, v{o+1}
        v_cvt_pk_bf16_f32 v{o}, -v{o}, v{o+1}
        v_and_b32 v{o+1}, 0xffff0000, v{o}
        v_lshlrev_b32 v{o}, 16, v{o}
        v_add_f32 v{o+1}, {f2h(1e-5)}, v{o+1}
        v_cvt_pk_bf16_f32 v{o+1}, v{o+1}, v{o+1}
        v_lshlrev_b32 v{o+1}, 16, v{o+1}
        v_sqrt_f32 v{o+1}, v{o+1}
        v_cvt_pk_bf16_f32 v{o+1}, v{o+1}, v{o+1}
        v_lshlrev_b32 v{o+1}, 16, v{o+1}
        v_rcp_f32 v{o+2}, v{o+1}
        v_mul_f32 v{o+2}, {f2h(-math.log2(math.e))}, v{o+2}""".split("\n")
    if OPT["s4"]:
        for x, y in zip(fin[0][:3], fin[1][:3]): k(x); k(y)
        k("""
        v_permlane16_swap_b32 v20, v24
        v_permlane16_swap_b32 v28, v32
        v_add_f32 v20, v20, v24
        v_add_f32 v28, v28, v32
        v_mov_b32 v24, v20
        v_mov_b32 v32, v28
        v_permlane32_swap_b32 v20, v24
        v_permlane32_swap_b32 v28, v32
        v_add_f32 v20, v20, v24
        v_add_f32 v28, v28, v32
        """)
        for x in fin[0][3:]: k(x)
        k(f"""
        v_and_b32 v6, 31, v0
        v_lshlrev_b32 v6, 4, v6
        v_add_u32 v6, s24, v6
        ds_write_b128 v6, v[8:11]
        s_waitcnt lgkmcnt(0)
        s_barrier
        """)
    else:
      for x, y in zip(*fin): k(x); k(y)
      k(f"""
    s_mov_b64 exec, s[40:41]
    ds_write_b128 v6, v[8:11]
    ds_write_b128 v6, v[12:15] offset:256
    s_mov_b64 exec, -1
    s_waitcnt lgkmcnt(0)
    s_barrier
    """)
    stamp_end(k, 2, 2, ws="s[8:9]")
    k(f"""
    s_endpgm
    k3_comp:
    v_lshlrev_b32 v2, 2, v0
    s_lshl_b32 s26, s3, 8
    s_mul_i32 s27, s21, 896
    s_add_u32 s27, s27, s26
    s_add_u32 s27, s27, {CSP_OFF}
    s_waitcnt lgkmcnt(0)
    """)
    for i in range(8):
        k(f"buffer_load_dword v{8+i}, v2, s[8:11], s27 offen\ns_add_u32 s27, s27, {224*64}")
    if OPT["prio"]: k(f"s_setprio {OPT['prio']}")
    k(f"""
    s_add_u32 s26, s26, {CS}
    v_add_u32 v7, s26, v2
    s_and_b32 s24, s3, 1              ; z
    s_lshr_b32 s25, s3, 1             ; fh
    s_mul_i32 s26, s25, 7168
    v_add_u32 v2, s26, v1
    v_lshrrev_b32 v16, 4, v0
    v_bfe_u32 v17, v0, 2, 2
    v_lshl_add_u32 v18, v16, 3, v17
    v_lshlrev_b32 v18, 8, v18
    v_and_b32 v19, 3, v0
    v_lshl_add_u32 v18, v19, 3, v18
    v_add_u32 v18, {BR}, v18
    v_and_b32 v19, 1, v16
    v_lshl_add_u32 v19, v17, 1, v19
    s_lshl_b32 s26, s24, 2
    v_xor_b32 v19, s26, v19
    v_lshl_add_u32 v3, v19, 5, v18
    v_xor_b32 v4, 32, v3
    v_xor_b32 v5, 64, v3
    v_xor_b32 v6, 0x60, v3
    s_lshl_b32 s38, s20, 1
    s_add_u32 s38, s38, s24
    s_mul_i32 s38, s38, 224
    s_mul_i32 s26, s21, 14
    s_add_u32 s38, s38, s26
    s_mul_i32 s26, s25, 7
    s_add_u32 s38, s38, s26
    s_lshl_b32 s38, s38, 10
    s_add_u32 s38, s38, {HG_OFF}
    """)
    for i in range(56): k(f"v_mov_b64 v[{ACC+2*i}:{ACC+1+2*i}], 0")
    k(f"""
    s_waitcnt vmcnt(0)
    v_pk_add_f32 v[8:9], v[8:9], v[10:11]
    v_pk_add_f32 v[12:13], v[12:13], v[14:15]
    v_pk_add_f32 v[8:9], v[8:9], v[12:13]
    v_add_f32 v8, v8, v9
    ds_write_b32 v7, v8
    """)
    stamp(k, 0)
    k("s_barrier")
    stamp(k, 1)
    compute(k)
    stamp(k, 2)
    k(f"""
    v_lshrrev_b32 v2, 4, v0
    v_lshlrev_b32 v2, 4, v2
    s_mul_i32 s26, s25, 448
    s_add_u32 s26, s26, {CS}
    v_add_u32 v2, s26, v2
    v_and_b32 v3, 15, v0
    v_lshlrev_b32 v3, 4, v3
    s_lshl_b32 s26, s24, 10
    s_add_u32 s26, s26, {ST}
    v_add_u32 v3, s26, v3
    """)
    for j in range(7): k(f"ds_read_b128 v[{24+4*j}:{27+4*j}], v2 offset:{64*j}")
    k("s_barrier")
    for v in range(4): k(f"ds_read_b128 v[{8+4*v}:{11+4*v}], v3 offset:{256*v}")
    k("s_waitcnt lgkmcnt(0)")
    stamp(k, 3)
    epilogue(k)
    stamp(k, 4)
    stamp_end(k, 2, 5, ws="s[8:9]")
    k("""
    k3_end:
    s_endpgm
    """)
    return k
```

```python
from common import *
OPT = {}
UXL = 2048
KL = UXL + 16384
KSTR = 4160
SP = KL + 2 * KSTR
SPSTR = 2080
WST = SP + 2 * SPSTR + 64
WMOFF = 8192 + 64
WST2 = WST + 2 * WMOFF
LDS2 = WST2 + 8192

class Sched:
    def __init__(self, k):
        self.k = k; self.n = 0; self.pos = {}; self.done = -1
    def ds(self, txt, tag=None):
        self.k(txt);
        if tag is not None: self.pos[tag] = self.n
        self.n += 1
    def wait(self, *tags):
        p = max(self.pos[t] for t in tags)
        if p <= self.done: return
        c = self.n - 1 - p
        assert c <= 15, c
        self.k(f"s_waitcnt lgkmcnt({c})"); self.done = p

def conv_body(k, tiles, look=10):
    ACC = lambda ti: 64 + 16 * ti
    S = Sched(k)
    mf = []
    for p in range(-3, 4 * max(tiles) + 1):
        for ti, c in enumerate(tiles):
            n = 4 * c - p
            if 0 <= n <= 31: mf.append((p, ti, n))
    loads = []; seen = set()
    for idx, (p, ti, n) in enumerate(mf):
        if ("B", p) not in seen: seen.add(("B", p)); loads.append((idx, ("B", p)))
        if ("A", n) not in seen:
            seen.add(("A", n)); loads.append((idx, ("A0", n))); loads.append((idx, ("A1", n)))
    lastuse = {}
    for idx, (p, ti, n) in enumerate(mf): lastuse[p] = idx
    NB = 4
    def issue(l):
        kind, x = l
        if kind == "B":
            r = 16 + 4 * ((x + 3) % NB)
            S.ds(f"ds_read_b128 v[{r}:{r+3}], v{2 + (x & 1)} offset:{512*(x+3)}", l)
        else:
            hf = int(kind[1])
            S.ds(f"ds_read_b64_tr_b16 a[{4*x+2*hf}:{4*x+2*hf+1}], v4 offset:{128*x + 32*(1-hf)}", l)
    li = 0
    fill = []
    for idx, (p, ti, n) in enumerate(mf):
        need_pos = max(j for j, (i2, _) in enumerate(loads) if i2 <= idx)
        cnt = 0
        while li < len(loads) and (li <= need_pos or (li <= need_pos + look and (idx == 0 or cnt < 3))):
            i2, l = loads[li]
            if l[0] == "B" and l[1] - NB >= -3 and lastuse[l[1] - NB] >= idx: break
            if S.n - 1 - max(S.pos.get(("B", p), S.n), S.pos.get(("A1", n), S.n)) >= 14: break
            issue(l); li += 1; cnt += 1
        assert li > need_pos
        S.wait(("B", p), ("A1", n))
        r = 16 + 4 * ((p + 3) % NB)
        a = ACC(ti)
        cc = "0" if p == -3 else f"v[{a}:{a+15}]"
        k(f"v_mfma_f32_32x32x16_bf16 v[{a}:{a+15}], a[{4*n}:{4*n+3}], v[{r}:{r+3}], {cc}")
        if n == 0:
            c = tiles[ti]
            ep = [f"v_mov_b32 v{32+ti}, 0"]
            for m in range(1, 4):
                for j in range(4):
                    ep.append(f"v_add_f32_dpp v{a+4*j}, v{a+4*j+m}, v{a+4*j} row_ror:{4*m} row_mask:0xf bank_mask:0x{(0xf<<m)&0xf:x}")
                for j in range(4):
                    d = a + 4 * (j + 1) if j < 3 else 32 + ti
                    ep.append(f"v_add_f32_dpp v{d}, v{a+4*j+m}, v{d} row_ror:{4*m} row_mask:0xf bank_mask:0x{(1<<m)-1:x}")
            for e in ep: fill.append((idx + 3, e, False))
            fill.append((idx + 3, f"ds_write_b32 v5, v{32+ti} offset:{256*c+16}", True))
            fill.append((idx + 3, f"ds_read_b64 v[{36+2*ti}:{37+2*ti}], v6 offset:{2048*c}", True))
        cnt = 0
        while fill and fill[0][0] <= idx and cnt < 5:
            _, t, isds = fill.pop(0)
            if isds: S.ds(t)
            else: k(t)
            cnt += 1
    for _, t, isds in fill:
        if isds: S.ds(t)
        else: k(t)
    k("s_waitcnt lgkmcnt(0)")
    stamp(k, 1)
    k("s_barrier")
    for ti, c in enumerate(tiles):
        k(f"ds_read_b32 v{32+ti}, v5 offset:{256*c}")
    for ti, c in enumerate(tiles):
        x = 36 + 2 * ti; t = 44 + 4 * ti; a = ACC(ti)
        k(f"""
        v_lshlrev_b32 v{t}, 16, v{x}
        v_and_b32 v{t+1}, s24, v{x}
        v_lshlrev_b32 v{t+2}, 16, v{x+1}
        v_and_b32 v{t+3}, s24, v{x+1}
        v_add_f32 v{t}, v{t}, v{a}
        v_add_f32 v{t+1}, v{t+1}, v{a+4}
        v_add_f32 v{t+2}, v{t+2}, v{a+8}
        v_add_f32 v{t+3}, v{t+3}, v{a+12}
        v_cvt_pk_bf16_f32 v{x+1}, v{t+2}, v{t+3}
        """)
    for ti, c in enumerate(tiles):
        x = 36 + 2 * ti; t = 44 + 4 * ti
        k(f"""
        s_waitcnt lgkmcnt({3-ti})
        v_add_f32 v{t}, v{t}, v{32+ti}
        v_cvt_pk_bf16_f32 v{x}, v{t}, v{t+1}
        s_mov_b32 s25, {H_OFF + 2*c*131072}
        buffer_store_dwordx2 v[{x}:{x+1}], v7, s[8:11], s25 offen sc1
        """)

def gen_k2():
    k = Kern("k2_kernel", 256, 384, lds=LDS2, vgpr=128, agpr=128, sgpr=100)
    k("""
    s_cmp_ge_u32 s2, 256
    s_cbranch_scc1 k2_end
    s_load_dwordx2 s[8:9], s[0:1], 104
    s_load_dwordx4 s[12:15], s[0:1], 64
    s_load_dwordx2 s[16:17], s[0:1], 80
    """)
    spin(k, "k2", "s[8:9]")
    stamp0(k)
    k(f"""
    v_lshrrev_b32 v1, 6, v0
    v_and_b32 v0, 63, v0
    v_readfirstlane_b32 s3, v1
    s_mov_b32 s10, 0x10000000
    s_mov_b32 s11, 0x00020000
    s_cmp_ge_u32 s3, 4
    s_cbranch_scc1 k2_repack
    ; dp
    s_and_b32 s20, s2, 0xf0
    s_and_b32 s21, s2, 7
    s_lshl_b32 s21, s21, 1
    s_bfe_u32 s22, s2, 0x10003
    s_add_u32 s20, s20, s21
    s_add_u32 s20, s20, s22           ; dp
    s_lshr_b32 s21, s3, 1             ; ch
    s_and_b32 s22, s3, 1              ; par
    v_lshrrev_b32 v1, 2, v0
    v_lshlrev_b32 v1, 14, v1
    v_lshrrev_b32 v2, 4, v0
    v_xor_b32 v2, v2, v0
    v_and_b32 v2, 3, v2
    v_lshlrev_b32 v2, 4, v2
    s_lshl_b32 s23, s20, 6
    v_add3_u32 v1, v1, v2, s23
    v_lshlrev_b32 v2, 4, v0           ; lane*16
    s_lshl_b32 s23, s20, 1
    s_add_u32 s23, s23, s21           ; d
    s_lshl_b32 s26, s23, 12
    s_lshl_b32 s27, s22, 11
    s_add_u32 s26, s26, s27
    s_add_u32 s26, s26, {KW_OFF}
    s_mul_i32 s28, s21, {KSTR}
    s_add_u32 s28, s28, {KL}          ; KL(ch)
    s_add_u32 s27, s27, s28
    s_add_u32 m0, s27, 64
    s_lshl_b32 s29, s3, 18            ; n = wave + 4*j
    s_lshl_b32 s30, s3, 10
    s_add_u32 s30, s30, {UXL}
    s_waitcnt lgkmcnt(0)
    buffer_load_dwordx4 v2, s[8:11], s26 offen lds
    buffer_load_dwordx4 v2, s[8:11], s26 offen offset:1024 lds
    """)
    for j in range(4):
        k(f"s_mov_b32 m0, s30\ns_add_u32 s30, s30, 4096\nbuffer_load_dwordx4 v1, s[8:11], s29 offen lds\ns_add_u32 s29, s29, {4*262144}")
    k(f"""
    v_mov_b32 v8, 0
    v_mov_b32 v9, 0
    v_lshlrev_b32 v10, 3, v0
    s_lshl_b32 s29, s3, 9
    v_add_u32 v10, s29, v10
    ds_write_b64 v10, v[8:9]
    v_and_b32 v10, 7, v0
    v_lshlrev_b32 v10, 3, v10
    v_add_u32 v10, s28, v10
    ds_write_b64 v10, v[8:9]
    s_mul_i32 s29, s21, {SPSTR}
    s_add_u32 s29, s29, {SP}
    v_and_b32 v10, 1, v0
    v_lshlrev_b32 v10, 3, v10
    v_add_u32 v10, s29, v10
    ds_write_b64 v10, v[8:9]
    v_lshrrev_b32 v8, 5, v0
    v_bfe_u32 v9, v0, 2, 2
    v_bfe_u32 v10, v0, 4, 1
    v_and_b32 v11, 3, v0
    v_lshl_add_u32 v10, v10, 2, v11   ; a_l
    v_sub_u32 v12, v10, v8            ; a_l-hh
    v_lshlrev_b32 v13, 8, v12
    v_lshl_add_u32 v13, v9, 6, v13
    v_add_u32 v13, {UXL - 1536}, v13
    v_and_b32 v14, 3, v12
    v_xor_b32 v14, s21, v14
    v_lshl_add_u32 v2, v14, 4, v13
    v_xor_b32 v14, 2, v14
    v_lshl_add_u32 v3, v14, 4, v13
    v_and_b32 v12, 1, v0
    v_lshlrev_b32 v12, 5, v12
    v_bfe_u32 v13, v0, 4, 1
    v_lshl_add_u32 v12, v13, 4, v12
    v_bfe_u32 v13, v0, 1, 1
    v_lshl_add_u32 v12, v13, 3, v12
    v_lshl_add_u32 v12, v8, 6, v12
    v_lshlrev_b32 v13, 3, v9
    v_sub_u32 v12, v12, v13
    s_add_u32 s28, s28, 32
    v_add_u32 v4, s28, v12
    v_lshl_add_u32 v12, v10, 1, v8
    v_lshlrev_b32 v12, 4, v12
    v_lshl_add_u32 v12, v9, 2, v12
    v_add_u32 v5, s29, v12
    s_add_u32 s29, s21, 2
    v_xor_b32 v12, s29, v11
    v_lshlrev_b32 v12, 4, v12
    v_lshl_add_u32 v12, v10, 8, v12
    v_lshl_add_u32 v12, v9, 6, v12
    v_lshl_add_u32 v12, v8, 3, v12
    v_add_u32 v6, {UXL}, v12
    s_and_b32 s29, s23, 3
    v_xor_b32 v12, s29, v11
    v_lshlrev_b32 v12, 6, v12
    s_bfe_u32 s29, s23, 0x10003
    s_lshl_b32 s29, s29, 1
    v_xor_b32 v13, s29, v9
    v_lshl_add_u32 v12, v13, 4, v12
    v_lshl_add_u32 v12, v8, 3, v12
    v_bfe_u32 v13, v0, 4, 1
    v_lshl_add_u32 v12, v13, 17, v12
    s_lshl_b32 s29, s23, 8
    v_add_u32 v7, s29, v12
    s_mov_b32 s24, 0xffff0000
    s_waitcnt vmcnt(0) lgkmcnt(0)
    """)
    stamp(k, 0)
    k("""
    s_barrier
    s_cmp_eq_u32 s22, 1
    s_cbranch_scc1 k2_par1
    """)
    conv_body(k, [0, 3, 4, 7])
    stamp_end(k, 1, 2, ws="s[8:9]")
    k("s_endpgm\nk2_par1:")
    conv_body(k, [1, 2, 5, 6])
    stamp_end(k, 1, 2, ws="s[8:9]")
    k("s_endpgm")
    k(f"""
    k2_repack:
    s_cmp_ge_u32 s2, 224
    s_cbranch_scc1 k2_zero
    s_and_b32 s20, s2, 7              ; kr
    s_lshr_b32 s21, s2, 3             ; fb
    s_cmp_eq_u32 s3, 5
    s_cbranch_scc1 k2_repack2
    v_lshrrev_b32 v1, 3, v0
    v_mul_u32_u24 v1, 3584, v1
    v_and_b32 v2, 7, v0
    v_lshl_add_u32 v1, v2, 4, v1
    s_mul_i32 s22, s20, {64*3584}
    s_lshl_b32 s23, s21, 7
    s_add_u32 s22, s22, s23
    s_mov_b32 s18, {512*3584}
    s_mov_b32 s19, 0x00020000
    s_mov_b32 s30, {512*3584}
    s_mov_b32 s31, 0x00020000
    s_mov_b32 s23, {WST}
    s_waitcnt lgkmcnt(0)
    s_mov_b32 s16, s12
    s_mov_b32 s17, s13
    s_mov_b32 s28, s14
    s_mov_b32 s29, s15
    """)
    for j in range(8):
        k(f"""
        s_mov_b32 m0, {WST + 1024*j}
        buffer_load_dwordx4 v1, s[16:19], s22 offen lds
        s_mov_b32 m0, {WST + WMOFF + 1024*j}
        buffer_load_dwordx4 v1, s[28:31], s22 offen lds
        s_add_u32 s22, s22, {8*3584}
        """)
    k(f"""
    v_lshrrev_b32 v2, 4, v0
    v_lshlrev_b32 v2, 10, v2
    v_bfe_u32 v3, v0, 2, 2
    v_lshl_add_u32 v2, v3, 7, v2
    v_and_b32 v3, 3, v0
    v_lshl_add_u32 v2, v3, 3, v2
    v_add_u32 v2, {WST}, v2
    v_cmp_gt_u32 s[26:27], 2, v3
    v_lshlrev_b32 v3, 4, v0
    s_mul_i32 s22, s20, {2*224*1024}
    s_lshl_b32 s23, s21, 13
    s_add_u32 s22, s22, s23
    s_add_u32 s22, s22, {WP_OFF}
    s_add_u32 s23, s22, 4096
    v_lshlrev_b32 v4, 2, v0
    s_mul_i32 s24, s20, {224*64}
    s_lshl_b32 s25, s21, 9
    s_add_u32 s24, s24, s25
    s_add_u32 s24, s24, {CSP_OFF}
    s_mov_b32 s25, 0x3f803f80
    v_mov_b64 v[8:9], 0
    v_mov_b64 v[10:11], 0
    v_mov_b64 v[12:13], 0
    v_mov_b64 v[14:15], 0
    s_barrier
    """)
    nst = 0
    for c2 in range(2):
        k(f"s_waitcnt vmcnt({8 - 8*c2 + nst})")
        if c2 == 0: stamp(k, 0)
        G = lambda f: 16 + 8 * f
        U = lambda f: 20 + 8 * f
        T = lambda f, h: 48 + 32 * c2 + 8 * f + 4 * h
        for f in range(4):
            for m, R in enumerate((G, U)):
                for hf in range(2):
                    r = R(f) + 2 * hf
                    k(f"ds_read_b64_tr_b16 v[{r}:{r+1}], v2 offset:{m*WMOFF + c2*4096 + hf*512 + f*32}")
        k("s_mov_b64 vcc, s[26:27]")
        for f in range(4):
            k(f"s_waitcnt lgkmcnt({12-4*f})")
            for q in range(4):
                k(f"v_cndmask_b32_dpp v{T(f,0)+q}, v{U(f)+q}, v{G(f)+q}, vcc quad_perm:[0,1,0,1] row_mask:0xf bank_mask:0xf")
            k(f"buffer_store_dwordx4 v[{T(f,0)}:{T(f,0)+3}], v3, s[8:11], s{22 + f//2} offen offset:{2048*(f&1)} sc1"); nst += 1
        k("s_not_b64 vcc, s[26:27]")
        for f in range(4):
            for q in range(4):
                k(f"v_cndmask_b32_dpp v{T(f,1)+q}, v{G(f)+q}, v{U(f)+q}, vcc quad_perm:[2,3,2,3] row_mask:0xf bank_mask:0xf")
            k(f"buffer_store_dwordx4 v[{T(f,1)}:{T(f,1)+3}], v3, s[8:11], s{22 + f//2} offen offset:{2048*(f&1)+1024} sc1"); nst += 1
        for q in range(4):
            for f in range(4):
                for h in range(2):
                    k(f"v_dot2c_f32_bf16 v{8+2*f+h}, s25, v{T(f,h)+q}")
        k(f"s_add_u32 s22, s22, {224*1024}\ns_add_u32 s23, s23, {224*1024}")
    for b in (8, 12): k(f"v_permlane16_swap_b32 v{b}, v{b+1}\nv_permlane16_swap_b32 v{b+2}, v{b+3}")
    for b in (8, 12): k(f"v_add_f32 v{b}, v{b}, v{b+1}\nv_add_f32 v{b+2}, v{b+2}, v{b+3}")
    for b in (8, 12): k(f"v_permlane32_swap_b32 v{b}, v{b+2}")
    for b in (8, 12): k(f"v_add_f32 v{b}, v{b}, v{b+2}")
    k("""
    buffer_store_dword v8, v4, s[8:11], s24 offen sc1
    buffer_store_dword v12, v4, s[8:11], s24 offen offset:256 sc1
    """)
    stamp_end(k, 1, 1, ws="s[8:9]")
    k(f"""
    s_endpgm
    k2_repack2:
    v_lshrrev_b32 v1, 3, v0
    v_lshlrev_b32 v1, 10, v1
    v_and_b32 v2, 7, v0
    v_lshl_add_u32 v1, v2, 4, v1
    s_lshl_b32 s22, s21, 16
    s_lshl_b32 s23, s20, 7
    s_add_u32 s22, s22, s23
    s_mov_b32 s18, {1792*1024}
    s_mov_b32 s19, 0x00020000
    s_waitcnt lgkmcnt(0)
    """)
    for j in range(8):
        k(f"""
        s_mov_b32 m0, {WST2 + 1024*j}
        buffer_load_dwordx4 v1, s[16:19], s22 offen lds
        s_add_u32 s22, s22, 8192
        """)
    k(f"""
    v_lshrrev_b32 v2, 5, v0
    v_lshlrev_b32 v2, 8, v2
    v_bfe_u32 v3, v0, 2, 1
    v_lshl_add_u32 v2, v3, 7, v2
    v_bfe_u32 v3, v0, 3, 1
    v_lshl_add_u32 v2, v3, 9, v2
    v_bfe_u32 v3, v0, 4, 1
    v_lshl_add_u32 v2, v3, 5, v2
    v_and_b32 v3, 3, v0
    v_lshl_add_u32 v2, v3, 3, v2
    v_add_u32 v2, {WST2}, v2
    v_lshlrev_b32 v3, 4, v0
    s_mul_i32 s22, s20, {2*112*1024}
    s_lshl_b32 s23, s21, 12
    s_add_u32 s22, s22, s23
    s_add_u32 s22, s22, {WD_OFF}
    s_add_u32 s23, s22, {112*1024}
    s_barrier
    """)
    nst = 0
    for fs in range(4):
        k(f"s_waitcnt vmcnt({6 - 2*fs + nst})")
        if fs == 0: stamp(k, 0)
        for dl in range(2):
            for hf in range(2):
                r = 16 + 8 * fs + 4 * dl + 2 * hf
                k(f"ds_read_b64_tr_b16 v[{r}:{r+1}], v2 offset:{fs*2048 + hf*1024 + dl*64}")
        for dl in range(2):
            r = 16 + 8 * fs + 4 * dl
            k(f"s_waitcnt lgkmcnt({2-2*dl})")
            k(f"buffer_store_dwordx4 v[{r}:{r+3}], v3, s[8:11], s{22+dl} offen offset:{1024*fs} sc1"); nst += 1
    stamp_end(k, 1, 1, ws="s[8:9]")
    k(f"""
    s_endpgm
    k2_zero:
    s_cmp_eq_u32 s3, 5
    s_cbranch_scc1 k2_end
    v_lshlrev_b32 v1, 2, v0
    s_mul_i32 s20, s2, {FBS}
    s_add_u32 s20, s20, {CNT_OFF - 224*FBS}
    v_mov_b32 v2, 0
    s_lshl_b32 s21, s2, 12
    s_add_u32 s21, s21, {CNT_OFF + 262144 - 224*4096}
    v_lshlrev_b32 v3, 6, v0
    s_waitcnt lgkmcnt(0)
    buffer_store_dword v2, v1, s[8:11], s20 offen sc1
    buffer_store_dword v2, v1, s[8:11], s21 offen sc1
    buffer_store_dword v2, v3, s[8:11], s21 offen sc1
    k2_end:
    s_endpgm
    """)
    return k
```

```python
from common import *
import math
NS = 4
ASL = 14336
BR = NS * ASL
CH = 32768
HT = 4 * CH
CS = HT + 8192
ST = CS + 1024
LDS3 = ST + 2048
PSTR = 8208
SPB_OFF = CNT_OFF + MB
F1_OFF = CNT_OFF + 128
F2_OFF = CNT_OFF + 262144
OPT = dict(D=3, prio=0, lprio=1, map=1, rot=0, D2=2, early=11, slp=1, cl=[0,0,0,0], lw=[0]*13+[6,6,6], hm='sc1', wm='', thr=5, eint=0, eprio=1, slp2=1, G=4, pipe=5, fst=7, ib=0, nod=0, nomf=0, nord=0)
P_, Q_ = 8, 52
ACC = 96
W0 = 52
AC2 = 176
def slot2(c): return ((c + 1) % 4) * CH

def dma_ops(sl):
    return [
        f"s_add_u32 m0, s34, {sl*8192}\nbuffer_load_dwordx4 v1, s[16:19], s31 offen lds",
        "buffer_load_dwordx4 v1, s[16:19], s31 offen offset:1024 lds\ns_add_u32 s31, s31, 8192",
        f"s_add_u32 m0, s33, {sl*ASL}\nbuffer_load_dwordx4 v1, s[12:15], s30 offen lds",
        "buffer_load_dwordx4 v1, s[12:15], s30 offen offset:1024 lds",
        "buffer_load_dwordx4 v1, s[12:15], s30 offen offset:2048 lds",
        f"""s_mov_b32 exec_hi, 0
        buffer_load_dwordx4 v1, s[12:15], s30 offen offset:3072 lds
        s_mov_b32 exec_hi, -1
        s_add_u32 s30, s30, {224*1024}""",
    ]

def reads(base, sl):
    r = []
    for v in range(4):
        r.append(f"ds_read_b64_tr_b16 v[{base+4*v}:{base+4*v+1}], v{3+v} offset:{sl*8192}")
        r.append(f"ds_read_b64_tr_b16 v[{base+4*v+2}:{base+4*v+3}], v{3+v} offset:{sl*8192+1024}")
    for j in range(7):
        r.append(f"ds_read_b128 v[{base+16+4*j}:{base+19+4*j}], v2 offset:{sl*ASL + j*1024}")
    return r

def run(k, cur, rd, vm=()):
    k("s_waitcnt lgkmcnt(0)")
    n = 0
    pos = {2 + (26 * i) // max(1, len(vm)): x for i, x in enumerate(vm)}
    for j in range(7):
        for v in range(4):
            a = ACC + 16 * j + 4 * v
            k(f"v_mfma_f32_16x16x32_bf16 v[{a}:{a+3}], v[{cur+16+4*j}:{cur+19+4*j}], v[{cur+4*v}:{cur+4*v+3}], v[{a}:{a+3}]")
            if n == 0: k("s_barrier")
            if n < len(rd): k(rd[n])
            if n in pos: k(pos[n])
            n += 1

def compute(k):
    for r in reads(P_, 0): k(r)
    lab = k.label("loop")
    k(f"s_mov_b32 s36, 3\n{lab}:")
    for c in range(4):
        cur, nxt = (P_, Q_) if c % 2 == 0 else (Q_, P_)
        run(k, cur, reads(nxt, (c + 1) % NS))
    k(f"s_sub_u32 s36, s36, 1\ns_cmp_lg_u32 s36, 0\ns_cbranch_scc1 {lab}")
    cl = OPT["cl"]; s0 = 28 - sum(cl); vm = []
    for c in range(4):
        vm.append([wload(s) for s in range(s0, s0 + cl[c])]); s0 += cl[c]
    for c in range(3):
        cur, nxt = (P_, Q_) if c % 2 == 0 else (Q_, P_)
        run(k, cur, reads(nxt, (c + 1) % NS), vm[c])
    rd = [f"ds_read_b128 v[{8+4*v}:{11+4*v}], v7 offset:{256*v}" for v in range(4)]
    rd += [f"ds_read_b128 v[{24+4*j}:{27+4*j}], v0 offset:{64*j}" for j in range(7)]
    run(k, Q_, rd, vm[3])

def epilogue(k, vm):
    for j in range(7):
        for x in vm[j]: k(x)
        a0 = ACC + 16 * j; b = 24 + 4 * j
        A = [a0 + 4 * v for v in range(4)]; S = [8 + 4 * v for v in range(4)]
        for a, s in zip(A, S):
            k(f"v_pk_fma_f32 v[{a}:{a+1}], v[{b}:{b+1}], v[{s}:{s+1}], v[{a}:{a+1}] op_sel_hi:[1,0,1]")
        for a, s in zip(A, S): k(f"v_pk_mul_f32 v[{a}:{a+1}], v[{a}:{a+1}], v[{s+2}:{s+3}] op_sel_hi:[1,0]")
        for a, s in zip(A, S):
            k(f"v_exp_f32 v{a}, v{a}\nv_exp_f32 v{a+1}, v{a+1}")
            k(f"v_pk_fma_f32 v[{a+2}:{a+3}], v[{b+2}:{b+3}], v[{s}:{s+1}], v[{a+2}:{a+3}] op_sel_hi:[1,0,1]")
        for a, s in zip(A, S): k(f"v_pk_fma_f32 v[{a}:{a+1}], v[{a}:{a+1}], v[{s}:{s+1}], v[{s}:{s+1}] op_sel:[0,1,1] op_sel_hi:[1,1,1]")
        for a in A: k(f"v_rcp_f32 v{a}, v{a}\nv_rcp_f32 v{a+1}, v{a+1}")
        for a in A: k(f"v_pk_mul_f32 v[{a+2}:{a+3}], v[{a+2}:{a+3}], v[{a}:{a+1}]")
        for v, a in enumerate(A): k(f"v_cvt_pk_bf16_f32 v{a0+v}, v{a+2}, v{a+3}")
        k(f"""
        v_permlane16_swap_b32 v{a0}, v{a0+1}
        v_permlane16_swap_b32 v{a0+2}, v{a0+3}
        v_permlane32_swap_b32 v{a0}, v{a0+2}
        v_permlane32_swap_b32 v{a0+1}, v{a0+3}
        buffer_store_dwordx4 v[{a0}:{a0+3}], v1, s[8:11], s38 offen offset:{(j&3)*1024} sc1
        """)
        if j == 3: k("s_add_u32 s38, s38, 4096")

def adv(sreg, cnt, step):
    if not OPT["rot"]: return f"s_add_u32 {sreg}, {sreg}, {step}"
    return f"""s_add_u32 {sreg}, {sreg}, {step}
    s_add_u32 {cnt}, {cnt}, 1
    s_cmp_eq_u32 {cnt}, 7
    s_cselect_b32 s35, {7*step}, 0
    s_sub_u32 {sreg}, {sreg}, s35"""
GR = [4, 5, 6, 7, 28, 29, 32]
def wreg(s): return W0 + 4 * s if s < 16 else 208 + 4 * (s - 16)
def wload(s):
    return f"buffer_load_dwordx4 v[{wreg(s)}:{wreg(s)+3}], v1, s[8:11], s{GR[s>>2]} offen offset:{1024*(s&3)} {OPT['wm']}"
HTL = [f"s_lshl_b32 m0, s22, 11\ns_add_u32 m0, m0, {HT}\nbuffer_load_dwordx4 v48, s[8:11], s55 offen lds",
       f"s_add_u32 m0, m0, 1024\ns_add_u32 s55, s55, 2048\nbuffer_load_dwordx4 v48, s[8:11], s55 offen lds"]

def poll(k, addr, tmp, first_loaded=False, slp=1):
    lp = k.label("poll"); dn = k.label("pdone"); ck = k.label("pchk")
    k("s_mov_b32 s37, 0x40000")
    if first_loaded: k(f"s_branch {ck}")
    k(f"""
    {lp}:
    buffer_load_dword v{tmp}, v{addr}, s[8:11], 0 offen sc1
    s_waitcnt vmcnt(0)
    {ck}:
    v_cmp_eq_u32 vcc, 0, v{tmp}
    s_cbranch_vccz {dn}
    {"s_sleep %d" % slp if slp else ""}
    s_sub_u32 s37, s37, 1
    s_cmp_lg_u32 s37, 0
    s_cbranch_scc1 {lp}
    {dn}:
    """)

def loader(k):
    D = OPT["D"]
    order = [("c", c) for c in range(D) for _ in range(6)]
    def vw(tag, extra=""):
        p = max(i for i, t in enumerate(order) if t == tag)
        k(f"s_waitcnt vmcnt({len(order)-1-p}){extra}")
    nw = 0
    for i in range(16):
        vw(("c", i), " lgkmcnt(0)" if i == 15 else "")
        k("s_barrier")
        if i == 0:
            k(f"""s_add_u32 m0, s34, {HT - BR}
            buffer_load_dwordx4 v1, s[16:19], s23 offen lds
            buffer_load_dwordx4 v1, s[16:19], s23 offen offset:1024 lds"""); order += ["sd", "sd"]
        if i == D:
            for v in range(2):
                k(f"ds_read_b64_tr_b16 v[{8+4*v}:{9+4*v}], v{2+v}\nds_read_b64_tr_b16 v[{10+4*v}:{11+4*v}], v{2+v} offset:1024")
            for v in range(2):
                k(f"s_waitcnt lgkmcnt({2-2*v})")
                k(f"v_mfma_f32_16x16x32_bf16 v[{20+4*v}:{23+4*v}], v[{8+4*v}:{11+4*v}], v[{8+4*v}:{11+4*v}], 0")
                k(f"v_mfma_f32_16x16x32_bf16 v[{28+4*v}:{31+4*v}], v[16:19], v[{8+4*v}:{11+4*v}], 0")
            for v in range(2):
                g = 20 + 4 * v; s_ = 28 + 4 * v
                k(f"""
                v_cndmask_b32 v{g}, v{g}, v{g+1}, s[42:43]
                v_cndmask_b32 v{g}, v{g}, v{g+2}, s[44:45]
                v_cndmask_b32 v{s_+1}, v{g}, v{g+3}, s[46:47]
                """)
            k("""
            s_mov_b64 exec, s[40:41]
            buffer_store_dwordx2 v[28:29], v4, s[8:11], 0 offen sc1
            buffer_store_dwordx2 v[32:33], v4, s[8:11], 0 offen offset:128 sc1
            s_mov_b64 exec, -1
            """); order += ["st", "st"]
        if i == 2 * D:
            k("s_mov_b64 exec, 1\nbuffer_store_dword v16, v5, s[8:11], s57 offen sc1\ns_mov_b64 exec, -1"); order.append("fl")
        if i == 3 * D:
            k("buffer_load_dword v8, v5, s[8:11], 0 offen sc1"); order.append("pl")
        if i == 4 * D:
            poll(k, 5, 8, True)
            for q in range(4):
                k(f"buffer_load_dwordx4 v[{20+4*q}:{23+4*q}], v1, s[8:11], s58 offen offset:{1024*q} sc1"); order.append("ga")
        if i + D < 16:
            for d in dma_ops((i + D) % NS): k(d)
            order += [("c", i + D)] * 6
        for s in range(nw, nw + OPT["lw"][i]): k(wload(s)); order.append("w")
        nw += OPT["lw"][i]
        if i == min(15, 5 * D):
            vw("ga")
            o = 8
            k(f"""
            v_pk_add_f32 v[20:21], v[20:21], v[24:25]
            v_pk_add_f32 v[22:23], v[22:23], v[26:27]
            v_pk_add_f32 v[28:29], v[28:29], v[32:33]
            v_pk_add_f32 v[30:31], v[30:31], v[34:35]
            v_pk_add_f32 v[20:21], v[20:21], v[28:29]
            v_pk_add_f32 v[22:23], v[22:23], v[30:31]
            v_permlane16_swap_b32 v20, v22
            v_permlane16_swap_b32 v21, v23
            v_pk_add_f32 v[20:21], v[20:21], v[22:23]
            v_mov_b64 v[22:23], v[20:21]
            v_permlane32_swap_b32 v20, v22
            v_permlane32_swap_b32 v21, v23
            v_pk_add_f32 v[20:21], v[20:21], v[22:23]
            v_mul_f32 v{o}, {f2h(1/512)}, v20
            v_mul_f32 v{o+1}, {f2h(1/512)}, v21
            v_fma_f32 v{o+1}, -v{o}, v{o}, v{o+1}
            v_max_f32 v{o+1}, 0, v{o+1}
            v_cvt_pk_bf16_f32 v{o}, -v{o}, v{o+1}
            v_and_b32 v{o+1}, 0xffff0000, v{o}
            v_lshlrev_b32 v{o}, 16, v{o}
            v_add_f32 v{o+1}, {f2h(1e-5)}, v{o+1}
            v_cvt_pk_bf16_f32 v{o+1}, v{o+1}, v{o+1}
            v_lshlrev_b32 v{o+1}, 16, v{o+1}
            v_sqrt_f32 v{o+1}, v{o+1}
            v_cvt_pk_bf16_f32 v{o+1}, v{o+1}, v{o+1}
            v_lshlrev_b32 v{o+1}, 16, v{o+1}
            v_rcp_f32 v{o+2}, v{o+1}
            v_mul_f32 v{o+2}, {f2h(-math.log2(math.e))}, v{o+2}
            ds_write_b128 v6, v[8:11]
            """)
    k("s_waitcnt lgkmcnt(0)\ns_barrier\ns_setprio 0")
    stamp(k, 1)
    for x in HTL + [wload(s) for s in range(nw, 28)]:
        if OPT["thr"]: k(f"s_waitcnt vmcnt({OPT['thr']})")
        k(x)

def p2setup(k):
    k(f"""
    v_lshrrev_b32 v4, 5, v0
    v_and_b32 v5, 31, v0
    v_lshlrev_b32 v2, 4, v5
    v_lshl_add_u32 v2, v4, 10, v2
    s_lshl_b32 s24, s63, 13
    v_add_u32 v2, s24, v2
    v_add_u32 v3, 65536, v2
    s_and_b32 s24, s63, 1
    s_lshl_b32 s24, s24, 4
    v_lshlrev_b32 v6, 3, v4
    v_add_u32 v6, s24, v6
    v_sub_u32 v6, v5, v6              ; i
    v_mov_b32 v7, 0x3f80
    v_mov_b32 v12, 0x3f800000
    """)
    for j in range(4):
        k(f"""
        v_cmp_eq_u32 vcc, {2*j}, v6
        v_cmp_eq_u32 s[26:27], {2*j+1}, v6
        v_cndmask_b32 v{8+j}, 0, v7, vcc
        v_cndmask_b32 v{8+j}, v{8+j}, v12, s[26:27]
        """)
    k(f"""
    v_bfe_u32 v6, v0, 2, 2
    v_lshl_add_u32 v7, v4, 3, v6
    v_lshlrev_b32 v7, 7, v7
    v_and_b32 v6, 1, v6
    s_lshr_b32 s25, s63, 1
    v_xor_b32 v6, s25, v6
    v_lshl_add_u32 v7, v6, 6, v7
    v_bfe_u32 v6, v0, 4, 1
    v_xor_b32 v6, v6, v4
    v_lshl_add_u32 v7, v6, 5, v7
    v_and_b32 v6, 3, v0
    v_lshl_add_u32 v7, v6, 3, v7
    s_lshl_b32 s24, s24, 7
    s_lshl_b32 s26, s62, 12
    s_add_u32 s24, s24, s26
    s_add_u32 s24, s24, {HT}
    v_add_u32 v6, s24, v7
    """)
    for i in range(16): k(f"v_mov_b64 v[{AC2+2*i}:{AC2+1+2*i}], 0")
    k(f"""
    v_lshrrev_b32 v12, 4, v0
    s_lshl_b32 s24, s3, 2
    v_add_u32 v12, s24, v12           ; idx
    v_bfe_u32 v13, v0, 3, 1           ; h
    v_bfe_u32 v14, v0, 2, 1           ; dh'
    v_and_b32 v15, 3, v0
    v_lshlrev_b32 v4, 8, v12
    v_lshl_add_u32 v4, v13, 7, v4
    v_lshl_add_u32 v4, v15, 5, v4
    v_mul_u32_u24 v14, {PSTR}, v14
    v_add_u32 v4, v4, v14
    v_lshrrev_b32 v14, 4, v12
    v_lshlrev_b32 v5, 5, v14
    v_lshl_add_u32 v5, v13, 4, v5
    v_and_b32 v14, 3, v12
    v_lshl_add_u32 v5, v14, 2, v5
    v_bfe_u32 v14, v12, 2, 2
    v_add_u32 v5, v5, v14
    v_lshlrev_b32 v5, 10, v5
    v_and_b32 v14, 7, v0
    v_lshl_add_u32 v5, v14, 4, v5
    s_lshl_b32 s34, s59, 16
    s_lshl_b32 s24, s61, 7
    s_add_u32 s34, s34, s24
    s_mul_i32 s33, s3, {PSTR}
    s_lshl_b32 s31, s3, 12
    """)

def phase2(k):
    G = OPT["G"]; NU = 28 // G; H = G // 2
    D = OPT["D2"] * (4 // G)
    order = []
    def usteps(u): return (u, [0, 1, 2, 3]) if G == 4 else (u >> 1, [u & 1, (u & 1) + 2])
    def dma(u):
        c, st = usteps(u); r = []
        ii = range(4) if G == 4 else (2 * (u & 1), 2 * (u & 1) + 1)
        for n, i in enumerate(ii):
            t = f"buffer_load_dwordx4 v1, s[8:11], s53 offen offset:{1024*i} {OPT['hm']} lds"
            if OPT["nod"] and u >= D: t = "s_nop 0"
            if n == 0: t = f"s_add_u32 m0, s31, {slot2(c)}\n" + t
            if i == 3 and c < 6: t += "\n" + adv("s53", "s54", 8192)
            r.append(t)
        return r
    def issue(u, r):
        k(r); order.append(u)
    for u in range(D):
        for r in dma(u): issue(u, r)
        if u < OPT["ib"]: k("s_barrier")
    RB = [16, 116]
    def rds(u):
        c, st = usteps(u); out = []
        for n, s in enumerate(st):
            for z in range(2):
                r = RB[u & 1] + 8 * n + 4 * z
                off = slot2(c) + s * 2048 + z * 512
                base = "v2"
                if off >= 65536: base = "v3"; off -= 65536
                out.append(f"ds_read_b128 v[{r}:{r+3}], {base} offset:{off}" if not OPT["nord"] else "s_nop 0")
        return out
    def mfs(u):
        c, st = usteps(u); out = []
        for n, s in enumerate(st):
            for z in range(2):
                r = RB[u & 1] + 8 * n + 4 * z; a = AC2 + 16 * z; w = wreg(4 * c + s)
                out.append(f"v_mfma_f32_32x32x16_bf16 v[{a}:{a+15}], v[{r}:{r+3}], v[{w}:{w+3}], v[{a}:{a+15}]" if not OPT["nomf"] else "s_nop 0")
        return out
    def vcnt(u):
        p = max(i for i, t in enumerate(order) if t == u)
        return len(order) - 1 - p
    k(f"s_waitcnt vmcnt({vcnt(0)})")
    stamp(k, 6)
    k("s_barrier")
    k("ds_read_b64_tr_b16 v[12:13], v6\nds_read_b64_tr_b16 v[14:15], v6 offset:512")
    for r in rds(0): k(r)
    if D < NU:
        for r in dma(D): issue(D, r)
    k(f"""
    s_waitcnt lgkmcnt({2*G})
    s_cmp_ge_u32 s63, 2
    s_cbranch_scc1 k3_z1
    v_mfma_f32_32x32x16_bf16 v[{AC2}:{AC2+15}], v[12:15], v[8:11], v[{AC2}:{AC2+15}]
    s_branch k3_z2
    k3_z1:
    v_mfma_f32_32x32x16_bf16 v[{AC2+16}:{AC2+31}], v[12:15], v[8:11], v[{AC2+16}:{AC2+31}]
    k3_z2:
    """)
    for u in range(NU):
        m = mfs(u)
        if u == NU - 1:
            for n, x in enumerate(m): k(f"s_waitcnt lgkmcnt({len(m)-1-n})\n{x}")
            break
        pre = OPT["pipe"]
        k("s_waitcnt lgkmcnt(0)")
        for x in m[:pre]: k(x)
        k(f"s_waitcnt vmcnt({vcnt(u+1)})\ns_barrier")
        rd = rds(u + 1); dm = dma(u + 1 + D) if u + 1 + D < NU else []
        rest = m[pre:]
        per = -(-len(rd) // max(1, min(len(rest), 3)))
        for n, x in enumerate(rest):
            for r in rd[n*per:(n+1)*per]: k(r)
            k(x)
            if n >= 1 and dm and (len(rest) - n <= len(dm) or n >= 2): issue(u + 1 + D, dm.pop(0))
        for r in dm: issue(u + 1 + D, r)
    stamp(k, 7)
    k("s_mov_b32 m0, s33")
    for i in range(32): k(f"ds_write_addtid_b32 v{AC2+i} offset:{256*i}")
    k("s_waitcnt lgkmcnt(0)\ns_barrier")
    for q in range(4):
        k(f"ds_read_b128 v[{16+8*q}:{19+8*q}], v4 offset:{2*q*PSTR}")
        k(f"ds_read_b128 v[{20+8*q}:{23+8*q}], v4 offset:{2*q*PSTR+16}")
    k("s_waitcnt lgkmcnt(4)")
    for j in range(4): k(f"v_pk_add_f32 v[{16+2*j}:{17+2*j}], v[{16+2*j}:{17+2*j}], v[{24+2*j}:{25+2*j}]")
    k("s_waitcnt lgkmcnt(0)")
    for j in range(4): k(f"v_pk_add_f32 v[{32+2*j}:{33+2*j}], v[{32+2*j}:{33+2*j}], v[{40+2*j}:{41+2*j}]")
    for j in range(4): k(f"v_pk_add_f32 v[{16+2*j}:{17+2*j}], v[{16+2*j}:{17+2*j}], v[{32+2*j}:{33+2*j}]")
    for j in range(4): k(f"v_cvt_pk_bf16_f32 v{8+j}, v{16+2*j}, v{17+2*j}")
    k("buffer_store_dwordx4 v[8:11], v5, s[48:51], s34 offen")

def gen_k3():
    D = OPT["D"]
    k = Kern("k3_kernel", 256, 512, lds=LDS3, vgpr=256, sgpr=100)
    k("""
    s_cmp_ge_u32 s2, 256
    s_cbranch_scc1 k3_end
    s_load_dwordx2 s[8:9], s[0:1], 104
    s_load_dwordx2 s[48:49], s[0:1], 88
    """)
    spin(k, "k3", "s[8:9]")
    stamp0(k)
    if OPT["map"] == 0:
        mp = """
        s_and_b32 s20, s2, 1
        s_lshl_b32 s20, s20, 3
        s_bfe_u32 s21, s2, 0x30003
        s_add_u32 s20, s20, s21           ; tt
        s_bfe_u32 s21, s2, 0x20001
        s_lshl_b32 s21, s21, 2
        s_lshr_b32 s22, s2, 6
        s_add_u32 s21, s21, s22           ; ft
        """
    elif OPT["map"] == 1:
        mp = """
        s_bfe_u32 s20, s2, 0x20001
        s_lshl_b32 s20, s20, 2
        s_bfe_u32 s21, s2, 0x20003
        s_add_u32 s20, s20, s21           ; tt
        s_and_b32 s21, s2, 1
        s_lshl_b32 s21, s21, 3
        s_lshr_b32 s22, s2, 5
        s_add_u32 s21, s21, s22           ; ft
        """
    else:
        mp = """
        s_and_b32 s20, s2, 7
        s_lshl_b32 s20, s20, 1
        s_bfe_u32 s21, s2, 0x10003
        s_add_u32 s20, s20, s21           ; tt
        s_lshr_b32 s21, s2, 4             ; ft
        """
    p2 = f"""
    s_mov_b32 s50, {2048*1024}
    s_mov_b32 s51, 0x00020000
    s_lshr_b32 s60, s21, 3
    s_and_b32 s61, s21, 7
    s_lshl_b32 s59, s20, 1
    s_add_u32 s59, s59, s60
    s_and_b32 s62, s3, 1
    s_lshr_b32 s63, s3, 1
    s_mul_i32 s24, s63, 28
    s_mul_i32 s53, s59, 112
    s_add_u32 s53, s53, s24
    s_lshl_b32 s53, s53, 11
    s_lshl_b32 s25, s62, 12
    s_add_u32 s53, s53, s25
    s_add_u32 s53, s53, {HG_OFF}
    s_lshl_b32 s52, s61, 1
    s_add_u32 s52, s52, s62
    s_mul_i32 s52, s52, 112
    s_add_u32 s52, s52, s24
    s_lshl_b32 s52, s52, 10
    s_add_u32 s52, s52, {WD_OFF}
    v_lshrrev_b32 v48, 3, v0
    v_bfe_u32 v49, v0, 4, 1
    v_xor_b32 v49, s60, v49
    v_lshlrev_b32 v49, 7, v49
    v_lshl_add_u32 v48, v48, 8, v49
    v_and_b32 v49, 7, v0
    v_lshl_add_u32 v48, v49, 4, v48
    s_lshl_b32 s55, s20, 17
    s_lshl_b32 s25, s61, 14
    s_add_u32 s55, s55, s25
    s_lshl_b32 s25, s22, 12
    s_add_u32 s55, s55, s25
    s_add_u32 s55, s55, {H_OFF}
    """
    if OPT["rot"]: p2 += f"""
    s_cmp_eq_u32 s61, 7
    s_cselect_b32 s56, 3, s61
    s_mov_b32 s54, s56
    s_lshl_b32 s25, s56, 12
    s_add_u32 s52, s52, s25
    s_lshl_b32 s25, s56, 13
    s_add_u32 s53, s53, s25
    """
    for g in range(7):
        p2 += f"s_mov_b32 s{GR[g]}, s52\n"
        if g < 6: p2 += adv("s52", "s56", 4096) + "\n"
    k(f"""
    v_lshrrev_b32 v1, 6, v0
    v_and_b32 v0, 63, v0
    v_readfirstlane_b32 s3, v1
    s_mov_b32 s10, 0x10000000
    s_mov_b32 s11, 0x00020000
    {mp}
    s_and_b32 s22, s3, 3
    v_lshlrev_b32 v1, 4, v0
    s_cmp_lt_u32 s3, 4
    s_cbranch_scc1 k3_comp
    s_mov_b32 s14, {16*224*1024}
    s_mov_b32 s15, 0x00020000
    s_mov_b32 s18, 131072
    s_mov_b32 s19, 0x00020000
    s_lshl_b32 s23, s20, 17
    s_add_u32 s23, s23, {H_OFF}
    s_mul_i32 s33, s22, 3584
    s_mul_i32 s30, s21, {ASL}
    s_add_u32 s30, s30, s33
    s_lshl_b32 s31, s22, 11
    s_add_u32 s34, s31, {BR}
    s_waitcnt lgkmcnt(0)
    s_add_u32 s12, s8, {WP_OFF}
    s_addc_u32 s13, s9, 0
    s_add_u32 s16, s8, s23
    s_addc_u32 s17, s9, 0
    s_lshl_b32 s23, s21, 13
    s_add_u32 s23, s23, s31
    """)
    for c in range(D):
        for d in dma_ops(c): k(d)
    if OPT["lprio"]: k(f"s_setprio {OPT['lprio']}")
    k(f"""
    v_lshrrev_b32 v4, 4, v0
    v_bfe_u32 v5, v0, 2, 2
    v_lshl_add_u32 v6, v4, 3, v5
    v_lshlrev_b32 v6, 8, v6
    v_and_b32 v7, 3, v0
    v_lshl_add_u32 v6, v7, 3, v6
    v_add_u32 v6, {HT}, v6
    v_cmp_eq_u32 s[40:41], v4, v5
    v_cmp_eq_u32 s[42:43], 1, v7
    v_cmp_eq_u32 s[44:45], 2, v7
    v_cmp_eq_u32 s[46:47], 3, v7
    v_and_b32 v7, 1, v4
    v_lshl_add_u32 v8, v5, 1, v7
    s_lshl_b32 s24, s22, 1
    v_xor_b32 v8, s24, v8
    v_lshl_add_u32 v2, v8, 5, v6
    v_xor_b32 v3, 32, v2
    v_and_b32 v8, 15, v0
    v_lshl_add_u32 v6, v8, 1, v7
    v_lshlrev_b32 v6, 4, v6
    s_lshl_b32 s24, s22, 9
    s_add_u32 s24, s24, {ST}
    v_add_u32 v6, s24, v6
    s_lshl_b32 s24, s20, 2
    s_add_u32 s24, s24, s22
    s_lshl_b32 s58, s24, 12
    s_add_u32 s58, s58, {SPB_OFF}
    s_lshl_b32 s25, s21, 8
    s_add_u32 s25, s25, s58
    v_lshlrev_b32 v4, 3, v8
    v_add_u32 v4, s25, v4
    s_and_b32 s25, s24, 1
    s_lshl_b32 s25, s25, 6
    s_lshr_b32 s24, s24, 1
    s_mul_i32 s24, s24, {FBS}
    s_add_u32 s24, s24, s25
    s_add_u32 s24, s24, {F1_OFF}
    v_lshlrev_b32 v5, 2, v8
    v_add_u32 v5, s24, v5
    s_lshl_b32 s57, s21, 2
    v_mov_b32 v16, 0x3f803f80
    v_mov_b32 v17, v16
    v_mov_b32 v18, v16
    v_mov_b32 v19, v16
    {p2}
    """)
    stamp(k, 0)
    loader(k)
    stamp(k, 2)
    p2setup(k)
    k(f"""
    v_and_b32 v49, 31, v0
    v_lshlrev_b32 v49, {OPT["fst"]}, v49
    s_lshl_b32 s24, s59, 12
    s_add_u32 s24, s24, {F2_OFF}
    v_add_u32 v49, s24, v49
    """)
    stamp(k, 3)
    k(f"""
    s_barrier
    """)
    stamp(k, 4)
    k("s_cmp_eq_u32 s3, 4\ns_cbranch_scc0 k3_p2")
    poll(k, 49, 50, slp=OPT["slp2"])
    k(f"""
    s_branch k3_p2
    k3_comp:
    v_lshlrev_b32 v2, 2, v0
    s_lshl_b32 s26, s3, 8
    s_mul_i32 s27, s21, 896
    s_add_u32 s27, s27, s26
    s_add_u32 s27, s27, {CSP_OFF}
    s_waitcnt lgkmcnt(0)
    """)
    for i in range(8):
        k(f"buffer_load_dword v{8+i}, v2, s[8:11], s27 offen\ns_add_u32 s27, s27, {224*64}")
    if OPT["prio"]: k(f"s_setprio {OPT['prio']}")
    k(f"""
    s_add_u32 s26, s26, {CS}
    v_add_u32 v7, s26, v2
    s_and_b32 s24, s3, 1              ; z
    s_lshr_b32 s25, s3, 1             ; fh
    s_mul_i32 s26, s25, 7168
    v_add_u32 v2, s26, v1
    v_lshrrev_b32 v16, 4, v0
    v_bfe_u32 v17, v0, 2, 2
    v_lshl_add_u32 v18, v16, 3, v17
    v_lshlrev_b32 v18, 8, v18
    v_and_b32 v19, 3, v0
    v_lshl_add_u32 v18, v19, 3, v18
    v_add_u32 v18, {BR}, v18
    v_and_b32 v19, 1, v16
    v_lshl_add_u32 v19, v17, 1, v19
    s_lshl_b32 s26, s24, 2
    v_xor_b32 v19, s26, v19
    v_lshl_add_u32 v3, v19, 5, v18
    v_xor_b32 v4, 32, v3
    v_xor_b32 v5, 64, v3
    v_xor_b32 v6, 0x60, v3
    s_lshl_b32 s38, s20, 1
    s_add_u32 s38, s38, s24
    s_mul_i32 s38, s38, 224
    s_mul_i32 s26, s21, 14
    s_add_u32 s38, s38, s26
    s_mul_i32 s26, s25, 7
    s_add_u32 s38, s38, s26
    s_lshl_b32 s38, s38, 10
    s_add_u32 s38, s38, {HG_OFF}
    s_lshl_b32 s39, s20, 1
    s_add_u32 s39, s39, s24
    s_lshl_b32 s39, s39, 12
    s_lshl_b32 s26, s21, 1
    s_add_u32 s26, s26, s25
    s_lshl_b32 s26, s26, {OPT["fst"]}
    s_add_u32 s39, s39, s26
    s_add_u32 s39, s39, {F2_OFF}
    v_lshlrev_b32 v20, 4, v16
    s_mul_i32 s26, s25, 448
    s_add_u32 s26, s26, {CS}
    v_add_u32 v20, s26, v20
    v_and_b32 v21, 15, v0
    v_lshlrev_b32 v21, 4, v21
    s_lshl_b32 s26, s24, 10
    s_add_u32 s26, s26, {ST}
    v_add_u32 v21, s26, v21
    """)
    for i in range(56): k(f"v_mov_b64 v[{ACC+2*i}:{ACC+1+2*i}], 0")
    k(f"""
    s_waitcnt vmcnt(0)
    v_pk_add_f32 v[8:9], v[8:9], v[10:11]
    v_pk_add_f32 v[12:13], v[12:13], v[14:15]
    v_pk_add_f32 v[8:9], v[8:9], v[12:13]
    v_add_f32 v8, v8, v9
    ds_write_b32 v7, v8
    v_mov_b32 v0, v20
    v_mov_b32 v7, v21
    """)
    p2s = "\n".join(l for l in p2.split("\n") if not l.strip().startswith("v_"))
    k(p2s)
    stamp(k, 0)
    k("s_barrier")
    compute(k)
    stamp(k, 1)
    if OPT["eprio"]: k(f"s_setprio {OPT['eprio']}")
    E = OPT["early"]
    vm = [[] for _ in range(7)]
    for s in range(E): vm[(s // OPT["eint"]) if OPT["eint"] else 0].append(wload(s))
    for x in vm[0]: k(x)
    vm[0] = []
    k("s_waitcnt lgkmcnt(0)")
    epilogue(k, vm)
    stamp(k, 2)
    late = range(E, 28 - sum(OPT["cl"]))
    k("v_lshrrev_b32 v0, 4, v1")
    p2setup(k)
    k("""
    v_mov_b32 v49, 1
    s_mov_b64 exec, 1
    s_waitcnt vmcnt(0)
    buffer_store_dword v49, v1, s[8:11], s39 offen sc1
    s_mov_b64 exec, -1
    """)
    stamp(k, 3)
    k("s_barrier\ns_setprio 0")
    for s in late: k(wload(s))
    stamp(k, 4)
    k("k3_p2:\ns_barrier")
    stamp(k, 5)
    phase2(k)
    spin(k, "end", "s[8:9]")
    stamp_end(k, 2, 8, ws="s[8:9]")
    k("""
    k3_end:
    s_endpgm
    """)
    return k
```

```python
import sys
import common
args = sys.argv[1:]
common.DBG = "dbg" in args
common.RT = "rt" in args
for a in args:
    if a.startswith("spin="): common.SPIN = a[5:]
import importlib
from asmlib import *
ks = []
n = 4
for a in args:
    if a.startswith("n="): n = int(a[2:])
import k1, k2, k3, k4
if 'fused' in args:
    import k34 as k3
    n = 3
for a in args:
    if a.startswith("o") and a[2] == ":":
        kk, vv = a[3:].split("=")
        {"1": k1, "2": k2, "3": k3, "4": k4}[a[1]].OPT[kk] = eval(vv)
from k1 import gen_k1
ks.append(gen_k1())
if n >= 2:
    from k2 import gen_k2
    ks.append(gen_k2())
if n >= 3:
    ks.append(k3.gen_k3())
if n >= 4:
    from k4 import gen_k4
    ks.append(gen_k4())
L = list(ks)
for a in args:
    if a.startswith("empty="):
        e = Kern("e_kernel", 256, 64, lds=0, vgpr=8, sgpr=16)
        e("s_endpgm")
        ks.append(e); L += [e] * int(a[6:])
for a in args:
    if a.startswith("front="):
        e = Kern("e_kernel", 256, 64, lds=0, vgpr=8, sgpr=16)
        e("s_endpgm")
        ks.append(e); L = [e] * int(a[6:]) + L
    if a.startswith("rep="):
        i = int(a[4:]); L = L[:i] + [L[i-1]] + L[i:]
out = [a for a in args if a.endswith(".s")][0]
open(out, "w").write(build_file(ks, L))
```
